```python
import torch

def _softmax(x, axis=-1):
    return torch.softmax(x, dim=axis)
def _gelu(x):
    return torch.nn.functional.gelu(x, approximate="tanh")
def _silu(x):
    return torch.nn.functional.silu(x)
def _sigmoid(x):
    return torch.sigmoid(x)
def _layernorm(x, axis=-1, eps=1e-5):
    m = x.mean(dim=axis, keepdim=True)
    v = x.var(dim=axis, keepdim=True, unbiased=False)
    return (x - m) / torch.sqrt(v + eps)
def _scatter_add(tgt, idx, src, axis=0):
    return tgt.clone().index_add_(axis, idx, src)
def _segment_sum(src, seg, n):
    out = torch.zeros((n,) + src.shape[1:], dtype=src.dtype)
    return out.index_add_(0, seg, src)
def _pad(x, pw):
    flat = tuple(v for pair in reversed(pw) for v in pair)
    return torch.nn.functional.pad(x, flat)

kernel_name = 'interleave_layers__sliding_block_cached__dense_activation_gelu__decode'

def setup_inputs():

    _w = (lambda a: (lambda t: t.to(torch.bfloat16) if t.is_floating_point() else t)(torch.as_tensor(a)))
    def _A_setup():
        B, Sq, D = 1, 1, 640
        Hq, Hkv, Sk, Dh = 32, 32, 32768, 192
        assert Hq % Hkv == 0, (Hq, Hkv)
        return {
            "x": _w((lambda *s: torch.randn(*s, dtype=torch.bfloat16) * 0.1)(B, Sq, D)),
            "k_cache": _w((lambda *s: torch.randn(*s, dtype=torch.bfloat16) * 0.8)(B, Hkv, Sk, Dh)),
            "v_cache": _w((lambda *s: torch.randn(*s, dtype=torch.bfloat16) * 1.6)(B, Hkv, Sk, Dh)),
            "wq": _w((lambda *s: torch.randn(*s, dtype=torch.bfloat16) * 0.8)(D, Hq * Dh) * (D ** -0.5)),
            "wo": _w((lambda *s: torch.randn(*s, dtype=torch.bfloat16) * 1.6)(Hq * Dh, D) * ((Hq * Dh) ** -0.5)),
        }
    _A_in = _A_setup()

    def _B_setup():
        B, S, D, F = 1, 1, 640, 1536
        return {
            "x": _w((lambda *s: torch.randn(*s, dtype=torch.bfloat16) * 0.1)(B, S, D)),
            "w1": _w((lambda *s: torch.randn(*s, dtype=torch.bfloat16) * 0.4)(D, F) * (D ** -0.5)),
            "b1": _w((lambda *s: torch.randn(*s, dtype=torch.bfloat16) * 0.4)(F) * 0.01),
            "w2": _w((lambda *s: torch.randn(*s, dtype=torch.bfloat16) * 0.4)(F, D) * (F ** -0.5)),
            "b2": _w((lambda *s: torch.randn(*s, dtype=torch.bfloat16) * 0.4)(D) * 0.01),
        }
    _B_in = _B_setup()

    return {
        "A_x": _A_in["x"],
        "A_k_cache": _A_in["k_cache"],
        "A_v_cache": _A_in["v_cache"],
        "A_wq": _A_in["wq"],
        "A_wo": _A_in["wo"],
        "B_x": _B_in["x"],
        "B_w1": _B_in["w1"],
        "B_b1": _B_in["b1"],
        "B_w2": _B_in["w2"],
        "B_b2": _B_in["b2"],
    }

def reference(A_x, A_k_cache, A_v_cache, A_wq, A_wo, B_x, B_w1, B_b1, B_w2, B_b2):
    def _A_ref(x, k_cache, v_cache, wq, wo):
        B, Sq, D = x.shape
        Hq, Dh = 32, 192
        Hkv, Sk = k_cache.shape[1], k_cache.shape[2]
        W = min(4096, max(256, Sk // 4))
        rep = Hq // Hkv
        q = (lambda x, *d: x.permute(*d))((x @ wq).reshape(B, Sq, Hq, Dh), 0, 2, 1, 3)
        k = (lambda x, n, axis: torch.repeat_interleave(x, n, dim=axis))(k_cache[:, :, Sk - W:, :], rep, axis=1)
        v = (lambda x, n, axis: torch.repeat_interleave(x, n, dim=axis))(v_cache[:, :, Sk - W:, :], rep, axis=1)
        scores = torch.einsum("bhqd,bhkd->bhqk", q, k) * (Dh ** -0.5)
        p = _softmax(scores, axis=-1)
        o = torch.einsum("bhqk,bhkd->bhqd", p, v)
        return (lambda x, *d: x.permute(*d))(o, 0, 2, 1, 3).reshape(B, Sq, Hq * Dh) @ wo

    def _B_ref(x, w1, b1, w2, b2):
        h = torch.einsum("bsd,df->bsf", x, w1) + b1
        h = _gelu(h)
        return torch.einsum("bsf,fd->bsd", h, w2) + b2

    x = A_x
    x = x + _A_ref(_layernorm(x, axis=-1), A_k_cache, A_v_cache, A_wq, A_wo)
    x = x + _B_ref(_layernorm(x, axis=-1), B_w1, B_b1, B_w2, B_b2)
    x = x + _A_ref(_layernorm(x, axis=-1), A_k_cache, A_v_cache, A_wq, A_wo)
    x = x + _B_ref(_layernorm(x, axis=-1), B_w1, B_b1, B_w2, B_b2)
    return x
```

```python
import re

STRICT = [False]
TRANS = ("v_exp_f32", "v_log_f32", "v_rcp_f32", "v_rsq_f32", "v_sqrt_f32")


def _regs(tok):
    tok = tok.strip()
    if tok.startswith("-"):
        tok = tok[1:]
    m = re.fullmatch(r"([vs])(\d+)", tok)
    if m:
        return {(m.group(1), int(m.group(2)))}
    m = re.fullmatch(r"([vs])\[(\d+):(\d+)\]", tok)
    if m:
        return {(m.group(1), i) for i in range(int(m.group(2)), int(m.group(3)) + 1)}
    if tok == "vcc":
        return {("s", 106), ("s", 107)}
    if tok == "exec":
        return {("s", 126), ("s", 127)}
    if tok == "m0":
        return {("s", 124)}
    return set()


class Ins:
    def __init__(self, text):
        self.text = text
        t = text.split(";")[0].strip()
        self.label = t[:-1] if t.endswith(":") else None
        self.directive = t.startswith(".") and not self.label
        self.empty = t == ""
        self.op = ""
        self.defs = set()
        self.uses = set()
        self.kind = "none"
        self.dpp = False
        self.target = None
        self.states = 0
        self.wide_store = set()
        self.ab = set()
        self.cin = set()
        if self.label or self.directive or self.empty:
            return
        parts = t.split(None, 1)
        op = parts[0]
        self.op = op
        rest = parts[1] if len(parts) > 1 else ""
        ops = [o.strip() for o in re.split(r",(?![^\[\(]*[\]\)])", rest)] if rest else []
        mods = ""
        if ops:
            last = ops[-1].split(None, 1)
            ops[-1] = last[0]
            mods = last[1] if len(last) > 1 else ""
        self.mods = mods
        R = [_regs(o) for o in ops]
        self.states = 1
        U = lambda lst: set().union(*lst) if lst else set()
        if op == "s_nop":
            self.kind = "nop"
            self.states = int(ops[0], 0) + 1
        elif op.startswith("v_mfma"):
            self.kind = "mfma"
            self.defs = R[0]
            self.ab = R[1] | R[2]
            self.cin = R[3]
            self.uses = self.ab | self.cin
        elif op.startswith("v_smfmac"):
            self.kind = "mfma"
            self.defs = R[0]
            self.ab = R[1] | R[2] | R[3]
            self.cin = R[0]
            self.uses = self.ab | self.cin
        elif op.startswith("v_"):
            self.kind = "valu"
            self.dpp = op.endswith("_dpp")
            if op.startswith("v_permlane"):
                self.defs = R[0] | R[1]
                self.uses = R[0] | R[1]
            else:
                self.defs = R[0]
                self.uses = U(R[1:])
                if op.startswith("v_fmac") or self.dpp or op.startswith("v_writelane"):
                    self.uses |= R[0]
                if op.startswith("v_cndmask") and len(ops) == 3:
                    self.uses |= _regs("vcc")
        elif op.startswith("buffer_") or op.startswith("global_"):
            self.kind = "vmem"
            lds = " lds" in (" " + mods)
            if "_load" in op and not lds:
                self.defs = R[0]
                self.uses = U(R[1:])
            else:
                self.uses = U(R)
                if lds:
                    self.uses |= _regs("m0")
                    self.kind = "vmem_lds"
                if "store_dwordx4" in op or "store_dwordx3" in op:
                    self.wide_store = R[0] if op.startswith("buffer_") else R[1]
        elif op.startswith("ds_"):
            self.kind = "ds"
            if op.startswith("ds_read") or "_rtn" in op or op.startswith("ds_bperm") or op.startswith("ds_swiz"):
                self.defs = R[0]
                self.uses = U(R[1:])
            else:
                self.uses = U(R)
        elif op.startswith("s_cbranch") or op == "s_branch":
            self.kind = "branch"
            self.target = ops[0]
        elif op.startswith("s_load") or op.startswith("s_mem"):
            self.kind = "smem"
            self.defs = R[0]
            self.uses = U(R[1:])
        elif op.startswith("s_"):
            self.kind = "salu"
            if op.startswith("s_cmp") or op.startswith("s_bitcmp") or op in ("s_waitcnt", "s_barrier", "s_endpgm", "s_setprio"):
                self.uses = U(R)
            else:
                self.defs = R[0] if R else set()
                self.uses = U(R[1:])
        else:
            raise ValueError("unknown instruction: " + text)


def need(p, c):
    n = 0
    vd = {r for r in p.defs if r[0] == "v"}
    sd = {r for r in p.defs if r[0] == "s"}
    if p.kind == "valu":
        if c.kind == "valu":
            if c.dpp and vd & c.uses:
                n = max(n, 2)
            if c.op.startswith("v_permlane") and vd & c.uses:
                n = max(n, 2)
            if (c.op.startswith("v_readlane") or c.op.startswith("v_readfirstlane")) and vd & c.uses:
                n = max(n, 1)
            if p.op.replace("_e32", "").replace("_dpp", "") in TRANS and vd & c.uses:
                n = max(n, 1)
            if sd & c.uses:
                n = max(n, 4 if ("lane" in c.op and not c.op.startswith("v_perm")) else 2)
        if c.kind == "mfma" and vd & c.uses:
            n = max(n, 2)
        if c.kind in ("vmem", "vmem_lds") and sd & c.uses:
            n = max(n, 5)
    if p.kind == "mfma":
        if c.kind in ("valu", "vmem", "vmem_lds", "ds") and vd & (c.uses | c.defs):
            n = max(n, 8)
        if c.kind == "mfma":
            if vd & c.ab:
                n = max(n, 8)
            if vd & c.cin and c.cin != vd:
                n = max(n, 6)
            if vd & c.cin and c.cin == vd and p.op != c.op:
                n = max(n, 6)
        if c.kind == "valu" and p.cin & c.defs:
            n = max(n, 3)
        if c.kind == "valu" and p.op.startswith("v_smfmac") and p.ab & c.defs:
            pass
    if p.kind == "salu" and c.kind == "vmem_lds" and ("s", 124) in sd:
        n = max(n, 1)
    if p.wide_store and (p.wide_store & c.defs):
        n = max(n, 2 if c.kind == "valu" else 1)
    return n


def _deficit(hist, c):
    d = 0
    dist = 0
    nm = 0
    after = 0
    for p in reversed(hist):
        if dist >= 12:
            break
        if p.states == 0:
            continue
        eff = dist
        if p.kind == "mfma" and nm and "16x16x16" not in p.op and not STRICT[0]:
            eff = max(dist, 4 * nm + after - 1)
        d = max(d, need(p, c) - eff)
        if p.kind == "mfma" and "16x16x16" not in p.op:
            nm += 1
        elif nm == 0:
            after += p.states
        dist += p.states
    return d


def weave(*chains):
    chains = [list(ch) for ch in chains if ch]
    out = []
    hist = []
    while any(chains):
        best = None
        for k, ch in enumerate(chains):
            if not ch:
                continue
            c = Ins(ch[0])
            d = max(0, _deficit(hist, c))
            dep = 1 if hist and (hist[-1].defs & c.uses) else 0
            key = (d, dep, -len(ch))
            if best is None or key < best[0]:
                best = (key, k, c, d)
        _, k, c, d = best
        if d:
            hist.append(Ins(f"s_nop {d-1}"))
        hist.append(c)
        out.append(chains[k].pop(0))
    return out


class Asm:
    def __init__(self):
        self.lines = []

    def __call__(self, text):
        for ln in text.split("\n"):
            self.lines.append(ln.strip())

    def finish(self):
        out = []
        for ln in self.lines:
            c = Ins(ln)
            if c.states:
                hist = []
                for p in reversed(out):
                    if p.op in ("s_branch", "s_endpgm"):
                        break
                    hist.append(p)
                    if len(hist) > 40:
                        break
                hist.reverse()
                d = _deficit(hist, c)
                if d > 0:
                    out.append(Ins(f"s_nop {d-1}"))
            out.append(c)
        pos = {i.label: k for k, i in enumerate(out) if i.label}

        def walk(hist, k, budget, where):
            while k < len(out) and budget > 0:
                c = out[k]
                if c.states:
                    d = _deficit(hist, c)
                    if d > 0:
                        raise RuntimeError(f"hazard across branch {where}: {c.text} needs {d} more states")
                    hist = hist + [c]
                    budget -= c.states
                    if c.kind == "branch":
                        walk(hist, pos[c.target], budget, where)
                        if c.op == "s_branch":
                            return
                    if c.op == "s_endpgm":
                        return
                k += 1

        for k, b in enumerate(out):
            if b.kind == "branch":
                hist = []
                for p in reversed(out[:k]):
                    if p.op in ("s_branch", "s_endpgm"):
                        break
                    hist.append(p)
                    if len(hist) > 40:
                        break
                hist.reverse()
                walk(hist + [b], pos[b.target], 12, b.text)
        res = []
        for i in out:
            if i.label or i.directive or i.empty:
                res.append(i.text)
            else:
                res.append("    " + i.text)
        return "\n".join(res) + "\n"
```

```python
import sys, os, math, struct
sys.path.insert(0, os.path.dirname(os.path.abspath(__file__)))
from asmlib import Asm, weave, STRICT

NAME = "interleave_layers__sliding_block_cached__dense_activation_gelu__decode"
KNAME = NAME + "_kernel"


def f2u(x):
    return struct.unpack("<I", struct.pack("<f", x))[0]


LR = 0x20000
OP = lambda L: 21504 * L
LSE = lambda L: 12288 + 21504 * L
XL = lambda k: 12544 + 256 * k
HC = 13568
EEND = 21504
HS = lambda L: 34048 + 256 * L
QS1 = 34560
HP = lambda L: 34816 + 7680 * L
QP1 = 50176
LEND = 62464
F2 = 0x11000
QP0 = 0x12000
QS0 = QP0 + 24576
C0 = 0x100000
XA = lambda L: C0 + 81920 * L
XM = C0 + 163840
WS_SIZE = C0 + 245760
PROF = 0x300000
OOB = 0x40000000

QB, HB, XS, SL = 0, 384, 768, 896
DUM, MLB, RB, C1, XB, CS, OB, PB = 1024, 2048, 3072, 4608, 6144, 6912, 7680, 14336
OR = 416
WQ = 22528
WB = WQ + 40960
W1L, W2L = WB, WB + 24576
LDS_SIZE = WB + 49152

sK, sV, sWQ, sWO, sW1, sW2, sWS, sX, sB1, sB2, sOUT, sDBG = [8 + 4 * i for i in range(12)]
sR, sC, sW, sKV, sLOC, sL, sSLOW, sCNT, sFB = 56, 57, 58, 59, 60, 61, 62, 63, 64
sT = [65, 66, 67, 68, 69, 70, 71]
sODD = 72
sM = 74
sPUB = 3
TMASK = (16, 18, 6)
sNEAR = 0
sRO = 4
sPC = 4
STAMP0 = 76

KB, VB = 64, 160
srd = lambda b: f"s[{b}:{b+3}]"
vr = lambda b, n: f"v[{b}:{b+n-1}]" if n > 1 else f"v{b}"
FULL = "row_mask:0xf bank_mask:0xf"
XOR1 = "quad_perm:[1,0,3,2] " + FULL
XOR2 = "quad_perm:[2,3,0,1] " + FULL
HMIR = "row_half_mirror " + FULL
MIR = "row_mirror " + FULL


PADS = {'att': 6, 'attb': 0, 'sob': 2, 'fin': 1, 'm': 6, 'ng': 4, 'x6': 5, 'x1': 7, 'p1': 2, 'qt': 4, 'p11': 2, 'p10': 5, 'p9': 0, 'p3': 4}


def gen(prof=0, force_slow=0, d_pol=0, near=1, to=1, tm=3, tq=0, tf=0, td=1, woe=0, ka2=1, vf=1, tma=0, tmb=0, sl0=2, wf=0, wb=0, x_dirty=0, lc=0, strict=1, x_nw=0, pads=PADS, dly=None, gk=0, gm=11, gs=3, go=4, f1w=0, sob=4, qa=0, sobn=2, tl=0, xl=1, fl=0, tod=0, d_late=0, woh=0, wth=0, rk=12, rw=6, w1e=0, bearly=1, hqd=1, tk=8, tk2=0, pw=4, th5=16, dbl0=1, q0_at=1, nrace=1, thw=999, th6=999, th7=999, d_dbg=0, d_wb=0, touch=0, outpol=0, d_fix=0, d_a=0, d_b=0, d_sh=3, late_rst=1, warm_at=4, f1_at=6, f2_at=2, att_at=5, endmode=2, mshift=1, fast_hook=1, smode=2, qsync=1, fstore=0, cw1=2, cw2=0, x_noflag=0, x_nog=0, prio=1, qmode=1, at=0, na=3, nb=1, bar_at=7, late_m=1, ref=0, sf=6, aprio=0, x_nost=0, x_nowarm=0, x_nowo=0):
    STRICT[0] = bool(strict)
    A = Asm()
    ool = []
    uid = [0]

    def new(prefix):
        uid[0] += 1
        return f"L_{prefix}{uid[0]}"

    def stamp(i, always=False):
        if prof == 1 or (prof in (2, 4) and always):
            A(f"s_memrealtime s[{STAMP0+2*i}:{STAMP0+2*i+1}]")

    nstep = [0]
    npoll = [0]

    def wait(n):
        if prof == 4 and nstep[0]:
            A("s_waitcnt lgkmcnt(0)")
            A(f"v_writelane_b32 v7, s{STAMP0+2}, {nstep[0]}")
        A(f"s_waitcnt vmcnt({n})")
        if prof == 4:
            A(f"s_memrealtime s[{STAMP0+2}:{STAMP0+3}]")
            nstep[0] += 1
        if d_dbg == 3:
            nstep[0] += 1
            if nstep[0] in (d_a, d_b):
                A("s_waitcnt lgkmcnt(0)")
                A("s_memrealtime s[100:101]" if nstep[0] == d_a else "s_memrealtime s[94:95]")
                A("s_waitcnt lgkmcnt(0)")

    def place(name):
        if pads and name in pads:
            A(".p2align 5")
            if pads[name]:
                A(f".fill {pads[name]}, 4, 0xbf800000   ; placement of a branch target, never executed")

    def writeback(site):
        if wb & site:
            l = new("nowb")
            A(f"s_lshl3_add_u32 s{sM}, s{sRO}, s{sW}")
            A(f"s_cmp_lg_u32 s{sM}, 255")
            A(f"s_cbranch_scc1 {l}")
            A("buffer_wbl2 sc1")
            A(f"{l}:")

    def lwait(bit):
        A("s_nop 0" if x_nw & bit else "s_waitcnt lgkmcnt(0)")

    def dm(code):
        if d_dbg == 3 and code in (d_a, d_b):
            A("s_memrealtime s[100:101]" if code == d_a else "s_memrealtime s[94:95]")

    def ticket():
        A(f"s_cmp_lg_u32 s{sW}, {rw}")
        A("s_cbranch_scc1 L_notk")
        A(f"s_add_u32 s{sT[4]}, s{sC}, -9")
        A(f"v_mov_b32 v4, s{sT[4]}")
        A(f"s_cmp_lt_u32 s{sC}, 8")
        A("s_cbranch_scc1 L_notk")
        A("v_mov_b32 v4, 1")
        A(f"v_mov_b32 v5, {F2+256}")
        A("s_mov_b64 exec, 1")
        A(f"buffer_atomic_add v4, v5, {srd(sWS)}, s{sLOC} offen sc0 sc1")
        A("s_mov_b64 exec, -1")
        A("L_notk:")

    def role_write():
        A(f"s_cmp_lg_u32 s{sW}, {rw}")
        A("s_cbranch_scc1 L_notk2")
        A("v_add_u32 v4, 9, v4")
        A("v_and_b32 v4, 31, v4")
        A("s_mov_b64 exec, 1")
        A(f"ds_write_b32 v13, v4 offset:{SL+12}")
        A("s_mov_b64 exec, -1")
        A("L_notk2:")

    def wait_unless(th):
        if not tk or th > 256:
            wait(0)
            return
        l = new("skip")
        if prof == 4:
            A("s_waitcnt lgkmcnt(0)")
            A(f"v_writelane_b32 v7, s{STAMP0+2}, {nstep[0]}")
        A(f"s_cmp_ge_i32 s1, {th}")
        A(f"s_cbranch_scc1 {l}")
        A("s_waitcnt vmcnt(0)")
        A(f"{l}:")
        A("s_waitcnt vmcnt(3)")
        if prof == 4:
            A(f"s_memrealtime s[{STAMP0+2}:{STAMP0+3}]")
            nstep[0] += 1

    hit = [prof == 4 or (prof == 3 and ref > 13)]

    def pt(k):
        if prof == 3 and k in (ref, at):
            A(f"s_memtime s[{STAMP0+(2 if k == at else 0)}:{STAMP0+(3 if k == at else 1)}]")
            if k:
                hit[0] = True

    def lgk(n):
        A(f"s_waitcnt lgkmcnt({0 if (prof == 1 or hit[0]) else n})")

    def flush(base, always=False):
        if prof == 1 or (prof >= 2 and always):
            A("s_waitcnt lgkmcnt(0)")
            for i in range(13):
                A(f"v_writelane_b32 v7, s{STAMP0+2*i}, {base+i}")
                A(f"s_mov_b32 s{STAMP0+2*i}, 0")

    def lstore(stores, cmp=True):
        a, b = new("slow"), new("back")
        if cmp:
            A(f"s_cmp_lg_u32 s{sSLOW}, 0")
        A(f"s_cbranch_scc1 {a}")
        for s in stores:
            A(s)
        A(f"{b}:")
        ool.append([f"{a}:", "s_nop 7"] + [s + " sc1" if s.startswith("buffer_") else s for s in stores] + ["s_nop 1", f"s_branch {b}"])

    def poll(loads, check, shadow=None, own_wait=False, first=False):
        top, cont, tmo = new("poll"), new("cont"), new("tmo")
        mid = new("mid")
        if dly:
            for i in range(dly.get(npoll[0] + 1, 0)):
                A("s_nop 3")
                A("s_nop 3")
        if shadow is not None and first:
            shadow()
        elif shadow is not None:
            for s in loads:
                A(s)
            shadow()
            A(f"s_branch {mid}")
        npoll[0] += 1
        key = f"p{npoll[0]}"
        if pads and pads.get(key) is not None:
            if shadow is None or first:
                A(f"s_branch {top}")
            A(".p2align 5")
            n = pads.get(key, pads.get("p"))
            if n:
                A(f".fill {n}, 4, 0xbf800000   ; placement of a branch target, never executed")
        A(f"{top}:")
        for s in loads:
            A(s)
        A(f"s_sub_u32 s{sCNT}, s{sCNT}, 1")
        A(f"s_cbranch_scc1 {tmo}")
        A(f"{mid}:")
        if not own_wait:
            A("s_waitcnt vmcnt(0)")
        check()
        A(f"s_cbranch_vccnz {top}")
        A(f"{cont}:")
        ool.append([f"{tmo}:", f"s_mov_b32 s{sCNT}, 0", "s_waitcnt vmcnt(0)", f"s_branch {cont}"])
        return mid

    def kv_unit(which, u):
        base, s, vo = (KB, sK, 8) if which == "K" else (VB, sV, 9)
        so = f"s{sKV}"
        if u:
            A(f"s_add_u32 s{sT[0]}, s{sKV}, {u*64*3072}")
            so = f"s{sT[0]}"
        for t in range(3):
            A(f"buffer_load_dwordx4 {vr(base+24*(u>>1)+8*t+4*(u&1),4)}, v{vo}, {srd(s)}, {so} offen offset:{t*128} {'' if d_pol else 'nt'}")

    def dma(voff, s, soff_reg, m0_reg, n, sstep, mstep, more=False):
        for i in range(n):
            A(f"s_mov_b32 m0, s{m0_reg}")
            A(f"buffer_load_dwordx4 v{voff}, {srd(s)}, s{soff_reg} offen nt lds")
            if i < n - 1 or more:
                A(f"s_add_u32 s{m0_reg}, s{m0_reg}, {mstep}")
                A(f"s_add_u32 s{soff_reg}, s{soff_reg}, {sstep}")

    def allred8(op, dst, src):
        A(f"{op}_dpp v{dst}, v{src}, v{src} {XOR1}")
        A(f"{op}_dpp v{dst}, v{dst}, v{dst} {XOR2}")
        A(f"{op}_dpp v{dst}, v{dst}, v{dst} {HMIR}")

    def emit(lst):
        for x in lst:
            A(x)

    def row_sum(r, n=4):
        return [f"v_add_f32_dpp v{r}, v{r}, v{r} {m}" for m in (XOR1, XOR2, HMIR, MIR)[:n]]

    def ln_mean(s1, n=4):
        return row_sum(s1, n) + [f"v_mul_f32 v{s1}, {hex(f2u(1/640))}, v{s1}"]

    def ln_sq(q2, n=4):
        return row_sum(q2, n) + [f"v_mul_f32 v{q2}, {hex(f2u(1/640))}, v{q2}", f"v_add_f32 v{q2}, {hex(f2u(1e-5))}, v{q2}"]

    def ln_rstd(q2, s1):
        return [f"v_fma_f32 v{q2}, -v{s1}, v{s1}, v{q2}", f"v_max_f32 v{q2}, {hex(f2u(1e-5))}, v{q2}", f"v_rsq_f32 v{q2}, v{q2}"]

    def red_pair(a, b):
        return [f"v_permlane32_swap_b32 v{a}, v{b}", f"v_add_f32 v{a}, v{a}, v{b}", f"v_mov_b32 v{b}, v{a}",
                f"v_permlane16_swap_b32 v{a}, v{b}", f"v_add_f32 v{a}, v{a}, v{b}"]

    def red_quad(a):
        return [f"v_permlane32_swap_b32 v{a}, v{a+2}", f"v_permlane32_swap_b32 v{a+1}, v{a+3}", f"v_pk_add_f32 {vr(a,2)}, {vr(a,2)}, {vr(a+2,2)}",
                f"v_permlane16_swap_b32 v{a}, v{a+1}", f"v_add_f32 v{a}, v{a}, v{a+1}"]

    QSCALE = 192 ** -0.5 * math.log2(math.e)

    def x_operand(p, a):
        A(f"v_cndmask_b32 v{a}, v{p}, v59, s[{sODD}:{sODD+1}]")
        A(f"v_mov_b32_dpp v{a+1}, v{a} row_shl:4 {FULL}")
        A(f"v_mov_b32_dpp v{a+2}, v{a} row_shl:8 {FULL}")
        A(f"v_mov_b32_dpp v{a+3}, v{a} row_shl:12 {FULL}")

    def att_consts():
        A(f"s_lshl_b32 s{sT[1]}, s{sW}, 2")
        A("v_lshl_add_u32 v10, v0, 2, 64")
        A(f"v_writelane_b32 v10, s{sT[1]}, 63")
        A("v_and_b32 v11, 7, v0")
        A("v_lshlrev_b32 v11, 2, v11")
        A("v_lshrrev_b32 v12, 4, v0")
        A("v_mov_b32 v13, 0")
        A("v_and_b32 v14, 3, v0")
        A("v_mul_u32_u24 v14, 0x5555, v14")
        for i, m in enumerate(TMASK):
            A(f"s_mov_b32 s{m}, {hex(0x10001 << i)}")
            A(f"s_mov_b32 s{m+1}, {hex(0x10001 << i)}")
        A(f"s_lshl_b32 s{sT[1]}, s{sW}, 10")
        A(f"s_addk_i32 s{sT[1]}, {PB}")
        A(f"v_lshl_add_u32 v15, v12, 8, s{sT[1]}")
        A("v_and_b32 v16, 12, v0")
        A("v_lshl_add_u32 v15, v16, 4, v15")
        A("v_and_b32 v16, 1, v0")
        A("v_lshl_add_u32 v15, v16, 5, v15")
        A("v_and_b32 v16, 2, v0")
        A("v_lshl_add_u32 v15, v16, 2, v15")
        A("v_and_b32 v16, 0x3c, v0")
        A(f"v_lshl_add_u32 v16, v16, 2, s{sT[1]}")
        A("v_lshlrev_b32 v12, 3, v12")
        A(f"s_mul_i32 s{sT[2]}, s{sW}, {2*OR}")
        A(f"s_addk_i32 s{sT[2]}, {OB-DUM}")
        A("v_lshrrev_b32 v18, 5, v0")
        A(f"v_mul_u32_u24 v17, {OR}, v18")
        A(f"v_add_u32 v17, s{sT[2]}, v17")
        A("v_bfe_u32 v19, v0, 3, 1")
        A("v_xor_b32 v18, v18, v19")
        A("v_xor_b32 v18, 1, v18")
        A("v_mul_u32_u24 v17, v17, v18")
        A("v_and_b32 v18, 6, v0")
        A("v_lshl_add_u32 v17, v18, 4, v17")
        A("v_and_b32 v18, 1, v0")
        A("v_lshl_add_u32 v17, v18, 3, v17")
        A("v_bfe_u32 v18, v0, 4, 1")
        A("v_lshl_add_u32 v17, v18, 2, v17")
        A(f"v_add_u32 v17, {DUM}, v17")
        A(f"s_mul_i32 s{sT[2]}, s{sW}, 96")
        A("v_lshrrev_b32 v18, 2, v0")
        A(f"v_mul_u32_u24 v18, {OR}, v18")
        A("v_and_b32 v19, 3, v0")
        A("v_lshl_add_u32 v18, v19, 3, v18")
        A(f"v_add_u32 v18, s{sT[2]}, v18")
        A("v_and_b32 v57, 15, v0")
        A(f"s_lshl_b32 s{sT[2]}, s{sT[2]}, 3")
        A(f"s_lshr_b32 s{sT[1]}, s{sC}, 3")
        A(f"s_mul_i32 s{sT[1]}, s{sT[1]}, {3072-256}")
        A(f"s_add_u32 s{sT[2]}, s{sT[2]}, s{sT[1]}")
        A(f"s_lshl_b32 s{sT[1]}, s{sC}, 5")
        A(f"s_add_u32 s{sT[2]}, s{sT[2]}, s{sT[1]}")
        A(f"v_lshl_add_u32 v19, v57, 8, s{sT[2]}")
        A("v_add_u32 v57, 13, v57")
        A("v_lshrrev_b32 v57, 4, v57")
        A("v_lshl_or_b32 v19, v57, 30, v19")
        A("v_lshrrev_b32 v57, 4, v0")
        A("v_lshl_add_u32 v19, v57, 3, v19")

    def relayout(T):
        if True:
            for t in range(3):
                X = KB + 24 * T + 8 * t
                for i in range(4):
                    A(f"v_mov_b32 v{48+i}, v{X+i}")
                for i in range(4):
                    A(f"v_mov_b32_dpp v{X+i}, v{X+4+i} row_ror:8 row_mask:0xf bank_mask:0xc")
                for i in range(4):
                    A(f"v_mov_b32_dpp v{X+4+i}, v{48+i} row_ror:8 row_mask:0xf bank_mask:0x3")

    def zero(lo, hi):
        for r in range(lo, hi, 2):
            A(f"v_mov_b64 v[{r}:{r+1}], 0")

    def o_consts():
        A(f"s_and_b32 s{sT[2]}, s{sRO}, 1")
        A(f"s_cmp_ge_u32 s{sW}, 5")
        A(f"s_addc_u32 s9, s{sT[2]}, s{sT[2]}")
        A("v_lshrrev_b32 v5, 4, v0")
        A("v_lshl_add_u32 v5, v5, 1, v0")
        A("v_and_b32 v5, 7, v5")
        A(f"s_mul_i32 s8, s{sT[2]}, 6")
        A(f"s_add_u32 s8, s8, s{sW}")
        A("s_lshl_b32 s8, s8, 10")
        A("s_addk_i32 s8, -2048")
        A("v_lshl_add_u32 v4, v0, 4, s8")
        A("s_lshl_b32 s9, s9, 6")
        A("v_lshl_add_u32 v5, v5, 3, s9")
        A("v_bfe_u32 v8, v0, 3, 1")
        A("v_lshl_add_u32 v5, v8, 2, v5")
        A(f"s_lshl_b32 s8, s{sW}, 13")
        A(f"s_add_u32 s8, s8, {WB-16384}")
        A(f"s_lshl_b32 s9, s{sW}, 8")

    def att_zero():
        zero(32, 48)
        zero(52, 64)

    def q_operand(tile):
        A(f"s_and_b32 s{sM}, s{tile}, 3")
        A(f"s_lshl_b32 s{sM}, s{sM}, 5")
        A(f"s_lshr_b32 s{sM+1}, s{tile}, 2")
        A(f"s_mul_i32 s{sM+1}, s{sM+1}, 20480")
        A(f"v_xor_b32 v60, s{sM}, v3")
        A(f"v_add_u32 v60, s{sM+1}, v60")
        for h4 in range(2):
            A(f"ds_read_b64_tr_b16 {vr(20+2*h4,2)}, v60 offset:{WQ+16384+h4*512}")
        for kb in range(2):
            for q in range(4):
                A(f"ds_read_b64_tr_b16 {vr(24+8*kb+2*q,2)}, v60 offset:{WQ+kb*8192+(q>>1)*4096+(q&1)*512}")

    def q_matvec(a, waits=False):
        for kb, b in enumerate((24, 32, 20)):
            if waits:
                lgk(2 - kb)
            A(f"v_smfmac_f32_16x16x64_bf16 v[40:43], {vr(a+4*kb,4)}, {vr(b,8)}, v1")

    def xb_addr(dst, tmp):
        A(f"v_and_b32 v{dst}, 32, v0")
        A(f"v_bfe_u32 v{tmp}, v0, 2, 1")
        A(f"v_lshl_or_b32 v{dst}, v{tmp}, 4, v{dst}")
        A(f"v_bfe_u32 v{tmp}, v0, 3, 2")
        A(f"v_lshl_or_b32 v{dst}, v{tmp}, 2, v{dst}")

    def x64_addr(dst, tmp):
        A(f"v_and_b32 v{dst}, 12, v0")
        A(f"v_lshlrev_b32 v{dst}, 3, v{dst}")
        A(f"v_and_b32 v{tmp}, 3, v0")
        A(f"v_lshl_or_b32 v{dst}, v{tmp}, 2, v{dst}")
        A(f"v_lshrrev_b32 v{tmp}, 5, v0")
        A(f"v_lshl_or_b32 v{dst}, v{tmp}, 4, v{dst}")
        A(f"v_bfe_u32 v{tmp}, v0, 4, 1")
        A(f"v_lshl_or_b32 v{dst}, v{tmp}, 1, v{dst}")

    def gather64(n, soff, shadow=None, post=None):
        def chk():
            for i in range(1, n):
                A(f"s_waitcnt vmcnt({n-1-i})")
                for h in range(2):
                    A(f"v_pk_add_f32 {vr(44+2*h,2)}, {vr(44+2*h,2)}, {vr(44+4*i+2*h,2)}")
            if post is not None:
                post()
                A("v_cmp_u_f32 vcc, v44, v44")
                return
            A("v_maximum3_f32 v48, v44, v45, v46")
            A("v_cmp_u_f32 vcc, v48, v47")
        poll([f"buffer_load_dwordx4 {vr(44+4*i,4)}, v8, {srd(sWS)}, s{soff} offen offset:{1024*i} sc1" for i in range(n)], chk, shadow, True)

    def x_sums_prep(qs):
        A("v_and_b32 v60, 1, v0")
        A("v_mul_u32_u24 v60, 384, v60")
        A("v_and_or_b32 v60, v0, 48, v60")
        only_lanes(61, 0)
        A(f"s_lshl3_add_u32 s{sT[4]}, s{sC}, s{sLOC}")
        A(f"s_add_u32 s{sT[4]}, s{sT[4]}, {qs}")
        A(f"s_cmp_lg_u32 s{sSLOW}, 0")

    def x_sums():
        for i in range(5):
            A(f"ds_read_b128 {vr(20+4*i,4)}, v60 offset:{XB+64*i}")
        for i in range(5):
            lgk(4 - i)
            A(f"v_mfma_f32_16x16x32_bf16 v[40:43], {vr(20+4*i,4)}, {vr(20+4*i,4)}, {'v[40:43]' if i else 0}")
        lstore([f"buffer_store_dwordx2 v[40:41], v61, {srd(sWS)}, s{sT[4]} offen"], cmp=False)

    def only_lanes(dst, shift):
        if shift:
            A(f"v_lshrrev_b32 v{dst}, {shift}, v0")
            A(f"v_min_u32 v{dst}, 1, v{dst}")
        else:
            A(f"v_min_u32 v{dst}, 1, v0")
        A(f"v_lshlrev_b32 v{dst}, 30, v{dst}")

    def row128_voff(dst, stride, t1, t2, par):
        A(f"v_lshrrev_b32 v{t1}, 3, v0")
        A(f"v_mul_u32_u24 v{dst}, {stride}, v{t1}")
        A(f"v_and_or_b32 v{t1}, v{t1}, 2, {par}")
        A(f"v_and_b32 v{t2}, 7, v0")
        A(f"v_xor_b32 v{t1}, v{t1}, v{t2}")
        A(f"v_lshl_add_u32 v{dst}, v{t1}, 4, v{dst}")

    def late_half(h, t0, t1=None):
        m, done = new("lwm"), new("lwd")
        hm = h - min(mshift, 1)
        t1 = t0 + 1 if t1 is None else t1
        A(f"s_and_b32 s{sT[5]}, s{sW}, 1")
        A(f"s_lshl_b32 s{sT[5]}, s{sT[5]}, 2")
        A(f"s_lshl_b32 s{sT[6]}, s{sW}, 10")
        A(f"s_add_u32 s{sT[6]}, s{sT[6]}, {WB + h*24576}")
        A(f"s_sub_u32 s{sT[4]}, s{sRO}, 20")
        if h == 2:
            A(f"s_branch {m}")
        elif hm >= 0:
            A(f"s_cmp_lt_u32 s{sT[4]}, 10")
            A(f"s_cbranch_scc1 {m}")
        row128_voff(t0, 1280, t1, t1 + 1, f"s{sT[5]}")
        A(f"s_and_b32 s{sT[5]}, s{sRO}, 1")
        A(f"s_lshl1_add_u32 s{sT[5]}, s{sR}, s{sT[5]}")
        A(f"s_mul_i32 s{sT[5]}, s{sT[5]}, 48")
        A(f"s_add_u32 s{sT[5]}, s{sT[5]}, s{sW}")
        if h:
            A(f"s_add_u32 s{sT[5]}, s{sT[5]}, 24")
        A(f"s_mul_i32 s{sT[5]}, s{sT[5]}, {8*1280}")
        A(f"s_lshr_b32 s{sT[4]}, s{sRO}, 1")
        A(f"s_lshl_b32 s{sT[4]}, s{sT[4]}, 7")
        A(f"s_add_u32 s{sT[4]}, s{sT[4]}, s{sT[5]}")
        dma(t0, sWO, sT[4], sT[6], 3, 64 * 1280, 8192)
        A(f"s_branch {done}")
        A(f"{m}:")
        if mshift:
            A(f"s_addk_i32 s{sT[6]}, -24576")
        if hm <= 0:
            row128_voff(t0, 3072, t1, t1 + 1, f"s{sT[5]}")
            A(f"s_lshl3_add_u32 s{sT[4]}, s{sT[4]}, s{sW}")
            A(f"s_mul_i32 s{sT[4]}, s{sT[4]}, {8*3072}")
            A(f"s_mul_i32 s{sT[5]}, s{sR}, 384")
            A(f"s_add_u32 s{sT[4]}, s{sT[4]}, s{sT[5]}")
            dma(t0, sW1, sT[4], sT[6], 3, 128, 8192)
        else:
            row128_voff(t0, 1280, t1, t1 + 1, f"s{sT[5]}")
            A(f"s_mul_i32 s{sT[5]}, s{sR}, 24")
            A(f"s_add_u32 s{sT[5]}, s{sT[5]}, s{sW}")
            A(f"s_mul_i32 s{sT[5]}, s{sT[5]}, {8*1280}")
            A(f"s_lshl_b32 s{sT[4]}, s{sT[4]}, 7")
            A(f"s_add_u32 s{sT[4]}, s{sT[4]}, s{sT[5]}")
            dma(t0, sW2, sT[4], sT[6], 3, 64 * 1280, 8192)
        A(f"{done}:")

    def phase2():
        if f1w:
            A("v_mov_b32 v16, 0")
            A(f"s_cmp_lg_u32 s{sW}, 0")
            A("s_cbranch_scc1 L_f1spin")
        A("L_flagchk:")
        A("v_and_b32 v15, 0x80808080, v13")
        A("v_cmp_ne_u32 vcc, 0x80808080, v15")
        if not x_noflag:
            A("s_cbranch_vccnz L_flagretry")
        A("L_flagok:")
        ool.append(["L_flagretry:", f"s_sub_u32 s{sCNT}, s{sCNT}, 1", "s_cbranch_scc1 L_flagtmo",
                    f"buffer_load_dword v13, v14, {srd(sDBG)}, 0 offen sc1", "s_waitcnt vmcnt(0)", "s_branch L_flagchk",
                    "L_flagtmo:", f"s_mov_b32 s{sCNT}, 0", "s_branch L_flagok"])
        stamp(3)
        A(f"s_mul_i32 s{sT[1]}, s{sFB}, 0x01010101")
        A(f"v_cmp_ne_u32 vcc, s{sT[1]}, v13")
        A(f"s_lshl_b32 s{sT[1]}, s{sR}, 3")
        A(f"s_lshr_b64 s[{sM}:{sM+1}], vcc, s{sT[1]}")
        A(f"s_and_b32 s{sM}, s{sM}, 0xff")
        A(f"s_cselect_b32 s{sSLOW}, {0 if x_noflag else 1}, {force_slow}")
        if f1w:
            A(f"v_mov_b32 v15, s{sSLOW}")
            A(f"ds_write_b32 v16, v15 offset:{SL+16}")
            A("L_f1spin:")
            A(f"ds_read_b32 v15, v16 offset:{SL+16}")
            A("s_waitcnt lgkmcnt(0)")
            A(f"v_readfirstlane_b32 s{sSLOW}, v15")
            A(f"s_cmp_eq_u32 s{sSLOW}, -1")
            A("s_cbranch_scc1 L_f1spin")
        only_lanes(58, 4)
        A("v_lshl_or_b32 v58, v0, 4, v58")
        A(f"s_and_b32 s{sT[3]}, s{sC}, 3")
        A(f"s_mul_i32 s{sT[5]}, s{sT[3]}, 6144")
        A(f"s_and_b32 s{sT[1]}, s{sC}, 0x1c")
        A(f"s_lshr_b32 s{sT[2]}, s{sW}, 1")
        A(f"s_add_u32 s{sT[1]}, s{sT[1]}, s{sT[2]}")
        A(f"s_lshl_b32 s{sT[1]}, s{sT[1]}, 8")
        A(f"s_add_u32 s{sT[5]}, s{sT[5]}, s{sT[1]}")
        A(f"s_and_b32 s{sT[1]}, s{sW}, 1")
        A(f"s_lshl3_add_u32 s{sT[5]}, s{sT[1]}, s{sT[5]}")
        A(f"s_add_u32 s{sT[5]}, s{sT[5]}, s{sLOC}")
        A(f"s_add_u32 s{sT[5]}, s{sT[5]}, {QP0 - 8*256}")
        A(f"s_cmp_lt_u32 s{sC}, {99 if x_nost & 2 else 8}")
        A("s_cbranch_scc1 L_p2a")
        lstore([f"buffer_store_dwordx2 v[40:41], v58, {srd(sWS)}, s{sT[5]} offen"])
        A("L_p2a:")
        A(f"s_lshl_b32 s{sT[1]}, s{sW}, 5")
        A(f"s_add_u32 s{sT[1]}, s{sT[1]}, s{sC}")
        A(f"s_cmp_ge_u32 s{sT[1]}, {0 if x_nost & 1 else LEND//1024}")
        A("s_cbranch_scc1 L_p2b")
        A(f"s_lshl_b32 s{sT[2]}, s{sT[1]}, 10")
        A(f"s_add_u32 s{sT[2]}, s{sT[2]}, s{sLOC}")
        for r in range(16, 20):
            A(f"v_mov_b32 v{r}, -1")
        A("v_lshlrev_b32 v15, 4, v0")
        lstore([f"buffer_store_dwordx4 v[16:19], v15, {srd(sWS)}, s{sT[2]} offen"])
        A("L_p2b:")
        A(f"s_sub_u32 s{sT[1]}, s{sT[1]}, 224")
        A(f"s_cmp_ge_u32 s{sT[1]}, 4")
        A("s_cbranch_scc1 L_p2c")
        x_sums_prep(QS0)
        x_sums()
        A("L_p2c:")

    def q0_gather():
        A("L_f2chk:")
        A("v_cmp_eq_u32 vcc, -1, v28")
        A("s_cbranch_vccnz L_f2retry")
        A("L_f2ok:")
        ool.append(["L_f2retry:", f"s_sub_u32 s{sCNT}, s{sCNT}, 1", "s_cbranch_scc1 L_f2tmo",
                    f"buffer_load_dword v28, v29, {srd(sWS)}, s{sT[3]} offen sc1", "s_waitcnt vmcnt(0)", "s_branch L_f2chk",
                    "L_f2tmo:", f"s_mov_b32 s{sCNT}, 0", "s_branch L_f2ok"])
        if prof == 1:
            A(f"v_writelane_b32 v7, s{sCNT}, 43")
        A("v_cmp_eq_u32 vcc, 1, v28")
        A(f"s_bcnt1_i32_b32 s{sNEAR}, vcc_lo")
        A(f"s_cmp_ge_u32 s{sNEAR}, 16")
        A(f"s_cselect_b32 s{sNEAR}, 8192, 0")
        if near >= 4:
            A(f"s_getreg_b32 s{sNEAR}, hwreg(HW_REG_XCC_ID, 2, 1)")
            A(f"s_xor_b32 s{sNEAR}, s{sNEAR}, {near & 1}")
            A(f"s_lshl_b32 s{sNEAR}, s{sNEAR}, 13")
        if prof:
            A(f"s_lshr_b32 s{sT[1]}, s{sNEAR}, 12")
            A(f"v_writelane_b32 v7, s{sT[1]}, 44")
        A(f"s_cmp_ge_u32 s{sW}, 6")
        A("s_cbranch_scc1 L_q0iss")
        A("v_lshrrev_b32 v28, 4, v0")
        A("v_mul_u32_u24 v28, 6144, v28")
        A("v_and_b32 v29, 15, v0")
        A("v_lshlrev_b32 v29, 4, v29")
        A("v_add_u32 v28, v28, v29")
        A("v_and_b32 v29, 16, v29")
        A(f"s_lshr_b32 s{sT[1]}, s{sC}, 3")
        A(f"s_mul_i32 s{sT[1]}, s{sT[1]}, 6")
        A(f"s_add_u32 s{sT[1]}, s{sT[1]}, s{sW}")
        A(f"s_lshl_b32 s{sT[1]}, s{sT[1]}, 8")
        A(f"s_add_u32 s{sT[1]}, s{sT[1]}, s{sLOC}")
        A(f"s_add_u32 s{sT[1]}, s{sT[1]}, {QP0}")
        A(f"s_add_u32 s{sT[2]}, s{sLOC}, {QS0}")
        if not x_nog:
            A(f"buffer_load_dwordx4 v[24:27], v29, {srd(sWS)}, s{sT[2]} offen sc1")
            A(f"buffer_load_dwordx4 v[20:23], v28, {srd(sWS)}, s{sT[1]} offen sc1")
        A("L_q0iss:")

    def q0_finish():
        A(f"s_cmp_ge_u32 s{sW}, 6")
        A("s_cbranch_scc1 L_q0done")
        A("v_pk_add_f32 v[24:25], v[24:25], v[26:27]")
        A(f"s_lshl_b32 s{sT[1]}, s{sW}, 6")
        A("v_and_b32 v28, 31, v6")
        A("v_and_or_b32 v28, v0, 32, v28")
        A(f"v_add_u32 v28, s{sT[1]}, v28")
        A("v_lshrrev_b32 v29, 5, v0")
        A("v_lshlrev_b32 v29, 4, v29")
        A("v_and_or_b32 v29, v0, 15, v29")
        A(f"s_lshl_b32 s{sT[1]}, s{sW}, 7")
        A(f"v_lshl_add_u32 v29, v29, 2, s{sT[1]}")
        emit(weave(ln_mean(25, 1), ln_sq(24, 1), red_pair(20, 22), red_pair(21, 23)))
        emit(ln_rstd(24, 25))
        A(f"ds_write_b32 v29, v21 offset:{CS}")
        A("v_fma_f32 v20, -v25, v21, v20")
        A(f"v_mul_f32 v20, {hex(f2u(QSCALE))}, v20")
        A("v_mul_f32 v20, v20, v24")
        A("v_cvt_pk_bf16_f32 v20, v20, v20")
        A(f"ds_write_b16 v28, v20 offset:{QB}")
        if qsync:
            A("v_mov_b32 v30, 1")
            A("s_mov_b64 exec, 1")
            A(f"ds_add_u32 v13, v30 offset:{SL}")
            A("s_mov_b64 exec, -1")
        stamp(4)
        A("L_q0done:")

    def xa_off(dst, m, tmp):
        A(f"s_lshr_b32 s{tmp}, s{m}, 1")
        A(f"s_lshl1_add_u32 s{tmp}, s{tmp}, s{m}")
        A(f"s_lshl_b32 s{tmp}, s{tmp}, 12")
        A(f"s_mul_i32 s{dst}, s{sL}, {XA(1)-XA(0)}")
        A(f"s_add_u32 s{dst}, s{dst}, s{tmp}")
        A(f"s_add_u32 s{dst}, s{dst}, {XA(0)}")

    def xm_off(dst, j):
        A(f"s_and_b32 s{dst}, s{j}, 0x1c")
        A(f"s_add_u32 s{dst}, s{dst}, s{j}")
        A(f"s_lshl_b32 s{dst}, s{dst}, 11")
        A(f"s_add_u32 s{dst}, s{dst}, {XM}")

    def race(rnd):
        l = new("norace")
        A(f"s_cmp_lg_u32 s{sW}, 5")
        A(f"s_cbranch_scc1 {l}")
        ld = lambda d, c: f"s_load_dword s{d}, s[{sWS}:{sWS+1}], s{18+c} glc"
        if rnd == 0:
            A("s_and_b32 s18, s2, 0xc0")
            A("s_add_u32 s18, s18, s2")
            A("s_lshl_b32 s18, s18, 7")
            A(f"s_add_u32 s18, s18, {XA(0)}")
            A("s_add_u32 s19, s18, 8192")
            A(ld(16, 0))
            A(ld(17, 1))
        else:
            for c in range(2):
                lp = new("arr")
                A("s_waitcnt lgkmcnt(0)")
                A("s_mov_b32 s16, 0")
                A(f"s_mov_b32 s{sT[4+c]}, -4096")
                A(ld(16, c))
                A(f"{lp}:")
                A(f"s_add_u32 s{sT[4+c]}, s{sT[4+c]}, 1")
                A(f"s_cbranch_scc1 {lp}x")
                A("s_cmp_eq_u32 s16, 0")
                A(f"s_cbranch_scc1 {lp}")
                A(f"{lp}x:")
            A("s_waitcnt lgkmcnt(0)")
            A(f"s_cmp_lt_u32 s{sT[5]}, s{sT[4]}")
            A("s_cselect_b32 s16, 1, 0")
            A("v_mov_b32 v48, s16")
            A("v_mov_b32 v49, 0")
            A(f"ds_write_b32 v49, v48 offset:{SL+8}")
        A(f"{l}:")

    def warm(wave, lo=EEND, hi=LEND, t=32, sC=sRO):
        l = new("nowarm")
        A(f"s_cmp_lg_u32 s{sW}, {99 if x_nowarm else wave}")
        A(f"s_cbranch_scc1 {l}")
        A(f"s_lshl_b32 s{sM}, s{sC}, 12")
        A(f"s_add_u32 s{sM}, s{sM}, s{sLOC}")
        A(f"s_add_u32 s{sM}, s{sM}, {lo}")
        A(f"s_cmp_ge_u32 s{sC}, {(hi-lo+4095)//4096}")
        A(f"s_cbranch_scc1 {l}")
        A(f"v_lshlrev_b32 v{t}, 6, v0")
        A(f"buffer_load_dword v{4 if t == 32 else 31}, v{t}, {srd(sWS)}, s{sM} offen sc1")
        A(f"{l}:")

    def lane_off(which):
        if which == "K":
            A("v_and_b32 v1, 7, v0")
            A("v_mul_u32_u24 v8, 384, v1")
            A("v_and_b32 v1, 8, v0")
            A("v_lshl_add_u32 v8, v1, 3, v8")
            A("v_and_or_b32 v8, v0, 48, v8")
        else:
            A("v_lshrrev_b32 v9, 3, v0")
            A("v_mul_u32_u24 v9, 384, v9")
            A("v_and_b32 v1, 7, v0")
            A("v_lshl_add_u32 v9, v1, 4, v9")

    def setup_rest():
        A(f"s_mov_b32 s{sWO+2}, {0 if x_nowo else 7864320}")
        A(f"s_mov_b32 s{sRO}, s{sC}")
        for b, n in ((sK if vf else sV, 402653184), (sW1, 1966080), (sW2, 1966080), (sWS, WS_SIZE), (sX, 1280), (sB1, 3072), (sB2, 1280), (sOUT, 1280), (sDBG, 256)):
            A(f"s_mov_b32 s{b+2}, {n}")
        for b in (sK if vf else sV, sWO, sW1, sW2, sWS, sX, sB1, sB2, sOUT, sDBG):
            A(f"s_mov_b32 s{b+3}, 0x20000")
        A(f"s_lshl_b32 s{sLOC}, s{sR}, 17")
        A(f"s_mov_b32 s{sODD}, 0xaaaaaaaa")
        A(f"s_mov_b32 s{sODD+1}, 0xaaaaaaaa")
        A(f"s_mov_b32 s{sCNT}, {hex(0x40 if (x_nost or x_nog or x_noflag) else 0x80000)}")
        A(f"s_mov_b32 s{sL}, 0")
        A(f"s_mov_b32 s{sSLOW}, 1")
        A(f"s_getreg_b32 s{sFB}, hwreg(HW_REG_XCC_ID, 0, 4)")
        A(f"s_or_b32 s{sFB}, s{sFB}, 0x80")
        lane_off("K" if vf else "V")
        A("v_and_b32 v2, 1, v0")
        A("v_mul_u32_u24 v1, 0xaaaa, v2")
        A("v_add_u32 v1, 0x4444, v1")
        A("v_lshlrev_b32 v2, 4, v2")
        A("v_and_b32 v13, 0x30, v0")
        A("v_lshl_or_b32 v2, v13, 1, v2")
        A("v_lshlrev_b32 v3, 6, v13")
        A("v_bfe_u32 v13, v0, 2, 2")
        A("v_lshl_or_b32 v3, v13, 7, v3")
        A("v_bfe_u32 v13, v0, 3, 2")
        A("v_lshl_or_b32 v3, v13, 5, v3")
        A("v_and_b32 v13, 3, v0")
        A("v_lshl_or_b32 v3, v13, 3, v3")
        A(f"s_lshl_b32 s{sT[1]}, s{sW}, 7")
        A("v_and_b32 v6, 0x30, v0")
        A("v_lshlrev_b32 v6, 1, v6")
        A("v_and_or_b32 v6, v0, 12, v6")
        A("v_bfe_u32 v13, v0, 1, 1")
        A("v_lshl_or_b32 v6, v13, 4, v6")
        A("v_and_b32 v13, 1, v0")
        A("v_lshl_or_b32 v6, v13, 1, v6")
        A(f"v_add_u32 v6, s{sT[1]}, v6")

    A("; ---- prologue")
    if d_dbg:
        A("s_memrealtime s[100:101]")
    sF, sG = (sV, sK) if vf else (sK, sV)
    seq = [("V", u) for u in range(vf)] + [("K", u) for u in range(8)] + [("V", u) for u in range(vf, 8)]
    A(f"s_load_dwordx2 s[{sF}:{sF+1}], s[0:1], {16 if vf else 8}")
    if ka2:
        A(f"s_load_dwordx2 s[{sWS}:{sWS+1}], s[0:1], 96")
    A(f"s_load_dwordx2 s[{sWQ}:{sWQ+1}], s[0:1], 24")
    A("s_cmp_ge_u32 s2, 256")
    A("s_cbranch_scc1 L_end")
    A("v_lshrrev_b32 v1, 6, v0")
    A(f"s_cmp_ge_u32 s2, {8 if cw1 else 0}")
    A(f"v_readfirstlane_b32 s{sW}, v1")
    A("s_cbranch_scc1 L_nocw")
    A(f"s_getpc_b64 s[{sPC}:{sPC+1}]")
    A("L_pc:")
    A("v_lshlrev_b32 v10, 6, v0")
    A("v_min_u32 v10, L_codeend-L_pc-4, v10")
    A("v_mov_b32 v11, 0")
    A(f"v_lshl_add_u64 v[10:11], v[10:11], 0, s[{sPC}:{sPC+1}]")
    A("global_load_dword v4, v[10:11], off")
    A("L_nocw:")
    if prof:
        for i in range(13):
            A(f"s_mov_b32 s{STAMP0+2*i}, 0")
        A("v_mov_b32 v7, 0")
    stamp(0, True)
    if d_late:
        A("s_and_b32 s90, s2, 7")
        A("s_cmp_lg_u32 s90, 3")
        A("s_cbranch_scc1 L_nolate")
        A(f"s_sleep {d_late}")
        A("L_nolate:")
    A(f"s_and_b32 s{sR}, s2, 7")
    A(f"s_lshr_b32 s{sC}, s2, 3")
    A(f"s_lshr_b32 s{sT[0]}, s2, 6")
    A(f"s_lshl2_add_u32 s{sT[0]}, s{sR}, s{sT[0]}")
    A(f"s_lshl_b32 s{sT[0]}, s{sT[0]}, 12")
    A(f"s_and_b32 s{sKV}, s2, 0x38")
    A(f"s_add_u32 s{sKV}, s{sKV}, s{sW}")
    A(f"s_add_u32 s{sKV}, s{sKV}, s{sT[0]}")
    A(f"s_addk_i32 s{sKV}, 3584")
    A(f"s_mul_i32 s{sKV}, s{sKV}, 3072")
    A("v_and_b32 v0, 63, v0")
    lane_off("V" if vf else "K")
    A(f"s_mov_b32 s{sF+2}, 402653184")
    A(f"s_mov_b32 s{sF+3}, 0x20000")
    def wq_addr():
        A(f"s_mov_b32 s{sWQ+2}, 7864320")
        A(f"s_mov_b32 s{sWQ+3}, 0x20000")
        A(f"s_and_b32 s{sT[1]}, s{sW}, 1")
        A(f"s_lshl_b32 s{sT[1]}, s{sT[1]}, 2")
        row128_voff(10, 12288, 12, 13, f"s{sT[1]}")
        A(f"s_and_b32 s{sT[5]}, s{sC}, 3")
        A(f"s_mul_i32 s{sT[5]}, s{sT[5]}, 20")
        A(f"s_and_b32 s{sT[6]}, s{sW}, 3")
        A(f"s_add_u32 s{sT[5]}, s{sT[5]}, s{sT[6]}")
        A(f"s_lshl_b32 s{sT[5]}, s{sT[5]}, 6")
        A(f"s_add_u32 s{sT[5]}, s{sT[5]}, s{sR}")
        A(f"s_mul_i32 s{sT[5]}, s{sT[5]}, 1536")
        A(f"s_and_b32 s{sT[1]}, s{sC}, 0x1c")
        A(f"s_lshr_b32 s{sT[2]}, s{sW}, 2")
        A(f"s_lshl1_add_u32 s{sT[1]}, s{sT[2]}, s{sT[1]}")
        A(f"s_lshl_b32 s{sT[1]}, s{sT[1]}, 6")
        A(f"s_add_u32 s{sT[5]}, s{sT[5]}, s{sT[1]}")
        A(f"s_addk_i32 s{sT[5]}, -512")
        A(f"s_mul_i32 s{sT[2]}, s{sT[2]}, 20")
        A(f"s_add_u32 s{sT[6]}, s{sT[6]}, s{sT[2]}")
        A(f"s_lshl_b32 s{sT[6]}, s{sT[6]}, 10")
        A(f"s_addk_i32 s{sT[6]}, {WQ}")
        A(f"s_mov_b32 s6, s{sT[5]}")
        A(f"s_mov_b32 s7, s{sT[6]}")

    second = seq.pop(9) if dbl0 else None
    if wf:
        wq_addr()
        A(f"s_cmp_lt_u32 s{sC}, 8")
    dm(100)
    A("s_waitcnt lgkmcnt(0)")
    dm(101)
    if wf:
        A("s_cbranch_scc1 L_wf0")
        dma(10, sWQ, 6, 7, 5, 32 * 12288, 4096)
        if wf == 2:
            A("s_branch L_wf1")
        A("L_wf0:")
    kv_unit(*seq[0])
    if dbl0 and not wf:
        kv_unit(*second)
    A("L_wf1:")
    dm(102)
    for b, off in ((sWS, 96), (sX, 0), (sG, 8 if vf else 16), (sWO, 32), (sW1, 48), (sB1, 56), (sW2, 64), (sB2, 72), (sOUT, 80), (sDBG, 88))[ka2:]:
        A(f"s_load_dwordx2 s[{b}:{b+1}], s[0:1], {off}")
    if not wf:
        wq_addr()
    A(f"s_cmp_lt_u32 s{sC}, 8")
    A("s_cbranch_scc1 L_nowq")
    n0 = (0, 5, 2, 3)[smode]
    if n0 and not wf:
        dma(10, sWQ, 6, 7, n0, 32 * 12288, 4096, True)
    A("L_nowq:")
    setup_rest()
    A(f"s_and_b32 s{sT[3]}, s{sC}, 3")
    dm(103)
    A("s_waitcnt lgkmcnt(0)")
    dm(104)
    A(f"s_cmp_lg_u32 s{sW}, 7")
    A("s_cbranch_scc1 L_nox0")
    A(f"s_mul_i32 s{sT[5]}, s{sT[3]}, 320")
    A("v_and_b32 v15, 0x3c, v0")
    for i in range(5):
        A(f"buffer_load_dword v{52+i}, v15, {srd(sX)}, s{sT[5]} offen offset:{64*i}")
    A("L_nox0:")
    def report(site):
        A(f"s_cmp_lg_u32 s3, {site}")
        A(f"s_cbranch_scc1 L_norep{site}")
        A("s_mov_b64 exec, 1")
        if not x_noflag & 1:
            A(f"buffer_atomic_or v62, v63, {srd(sDBG)}, 0 offen sc1")
        A("s_mov_b64 exec, -1")
        stamp(5)
        A(f"L_norep{site}:")

    A("s_mov_b32 s3, 0")
    A("v_mov_b32 v63, 0")
    A(f"s_cmp_eq_u32 s{sW}, 3")
    A("s_cbranch_scc1 L_w3")
    A("L_w3back:")
    report(1)
    A("v_bfe_u32 v12, v0, 1, 1")
    A("v_mul_u32_u24 v12, 384, v12")
    A("v_add_u32 v12, v12, v2")
    A(f"s_cmp_lt_u32 s{sC}, 8")
    if woe:
        A("s_cbranch_scc1 L_woe")
    wstep = nstep[0]
    wait(0)
    if wf:
        if wf == 2:
            A("s_cbranch_scc1 L_wf2")
            kv_unit(*seq[0])
            A("L_wf2:")
        kv_unit(*second)
        report(2)
        wait(0)
    elif n0 < 5:
        if not woe:
            A("s_cbranch_scc1 L_nowq2")
        if n0 == 0:
            dma(10, sWQ, 6, 7, 3, 32 * 12288, 4096, True)
            wait(0)
        dma(10, sWQ, 6, 7, 2 if n0 in (0, 3) else 3, 32 * 12288, 4096)
        report(2)
        wait(0)
        A("L_nowq2:")
    kv_unit(*seq[1])
    report(3)
    A(f"s_cmp_eq_u32 s{sW}, 7")
    A("s_cbranch_scc1 L_w7")
    A("L_w7back:")
    A("s_barrier")
    stamp(1)
    def q0_tile():
        A(f"s_cmp_lt_u32 s{sC}, 8")
        A("s_cbranch_scc1 L_noq0")
        for kb in range(3):
            A(f"ds_read_b128 {vr(44+4*kb,4)}, v12 offset:{XB+128*kb}")
        q_operand(sW)
        for r in range(40, 44):
            A(f"v_mov_b32 v{r}, 0")
        A("s_waitcnt lgkmcnt(0)")
        q_matvec(44)
        A("v_add_f32 v40, v40, v41")
        A("v_add_f32 v41, v42, v43")
        A("L_noq0:")

    if q0_at == 1:
        q0_tile()
    units = seq[2:9 + att_at]
    fstep = None
    for n, (which, u) in enumerate(units):
        k = n + 2
        if k == f1_at + 3:
            A("s_cbranch_vccnz L_flag2")
            fstep = nstep[0]
        if k == 13:
            wait_unless(th5)
        else:
            wait(0)
        if k == f1_at + 3:
            A("L_flagged2:")
        if tk and k == tk:
            A("v_and_b32 v31, 31, v0")
            A("v_lshlrev_b32 v31, 2, v31")
            A(f"s_add_u32 s{sT[3]}, s{sLOC}, {F2}")
            A(f"buffer_load_dword v31, v31, {srd(sWS)}, s{sT[3]} offen sc1")
        if gk and k in (gk, gk + 1, gk + 2):
            l = new("nog")
            A(f"s_cmp_lg_u32 s{sW}, 7")
            A(f"s_cbranch_scc1 {l}")
            if k == gk:
                A("v_mov_b32 v4, -9")
                A(f"s_cmp_lt_u32 s{sC}, 8")
                A(f"s_cbranch_scc1 {l}")
            else:
                if k == gk + 1:
                    A("v_readfirstlane_b32 s5, v4")
                A(f"s_cmp_lg_u32 s5, {gm-1}")
                A(f"s_cbranch_scc1 {l}")
            A("s_mov_b64 exec, 1")
            if k < gk + 2:
                A("v_mov_b32 v4, 1")
                A(f"v_mov_b32 v5, {F2+384 if k == gk else F2+512}")
                A(f"buffer_atomic_add v4, v5, {srd(sWS)}, {f's{sLOC}' if k == gk else 0} offen sc0 sc1")
            else:
                A("v_add_u32 v4, 1, v4")
                A(f"v_mov_b32 v5, {F2+640}")
                A(f"buffer_store_dword v4, v5, {srd(sWS)}, s{sLOC} offen")
            A("s_mov_b64 exec, -1")
            A(f"{l}:")
        if gk and k == 11:
            A(f"v_mov_b32 v8, {F2+640}")
            A(f"buffer_load_dword v8, v8, {srd(sWS)}, s{sLOC} offen sc1")
        if rk and k == rk:
            ticket()
        if tk2 and k == tk2:
            A("v_and_b32 v8, 31, v0")
            A("v_lshlrev_b32 v8, 2, v8")
            A(f"s_add_u32 s{sT[3]}, s{sLOC}, {QS1+128}")
            A(f"buffer_load_dword v8, v8, {srd(sWS)}, s{sT[3]} offen sc1")
            A(f"s_cmp_lg_u32 s{sW}, {pw}")
            A("s_cbranch_scc1 L_nopost")
            only_lanes(30, 0)
            A(f"s_lshl2_add_u32 s{sT[3]}, s{sC}, s{sT[3]}")
            A(f"buffer_store_dword v13, v30, {srd(sWS)}, s{sT[3]} offen")
            A("L_nopost:")
        if k == f1_at:
            A("v_lshlrev_b32 v14, 2, v0")
            if f1w:
                A(f"s_cmp_lg_u32 s{sW}, 0")
                A("s_cbranch_scc1 L_nof1")
            if not x_noflag & 2:
                A(f"buffer_load_dword v13, v14, {srd(sDBG)}, 0 offen sc1")
            A("L_nof1:")
        if k == 8 + f2_at:
            A("v_and_b32 v29, 31, v0")
            A("v_lshlrev_b32 v29, 2, v29")
            A(f"s_add_u32 s{sT[3]}, s{sLOC}, {F2}")
            A(f"buffer_load_dword v28, v29, {srd(sWS)}, s{sT[3]} offen sc1")
        if k == 8 + f2_at + 2 and warm_at >= 3:
            warm(6, 0, LEND if warm_at == 3 else EEND, 30, sC)
        kv_unit(which, u)
        if gk and k == 12:
            A(f"v_readfirstlane_b32 s{sT[1]}, v8")
            A(f"s_cmp_lt_u32 s{sT[1]}, 8")
            A(f"s_cselect_b32 s{sT[1]}, s{sT[1]}, {go}")
            if prof:
                A(f"v_writelane_b32 v7, s{sT[1]}, 47")
            A(f"s_sub_u32 s{sT[1]}, s{sT[1]}, {go}")
            A(f"s_mul_i32 s{sT[1]}, s{sT[1]}, {gs}")
            A(f"s_add_u32 s1, s1, s{sT[1]}")
            if prof:
                A("v_writelane_b32 v7, s1, 45")
        if rk and k == rk + 1:
            role_write()
        if tk and k == tk + 1:
            A("v_cmp_ne_u32 vcc, -1, v31")
            A("s_bcnt1_i32_b32 s1, vcc_lo")
            if prof:
                A("v_writelane_b32 v7, s1, 45")
        if k - vf in (2, 4, 6, 8):
            relayout((k - vf) // 2 - 1)
        if k == q0_at:
            q0_tile()
        if k == f1_at:
            race(0)
        if k == f1_at + 1:
            phase2()
            race(1)
        if k == f1_at + 2:
            A("v_mov_b32 v12, 0")
            A("v_mov_b32 v15, 1")
            A("s_mov_b64 exec, 1")
            A(f"ds_add_rtn_u32 v12, v12, v15 offset:{SL+4}")
            A("s_waitcnt lgkmcnt(0)")
            A("v_cmp_eq_u32 vcc, 7, v12")
            A("s_mov_b64 exec, -1")
        if k == 9:
            att_consts()
            att_zero()
            A(f"s_lshl_b32 s{sT[1]}, s{sW}, 10")
            A(f"v_lshl_add_u32 v48, v0, 4, s{sT[1]}")
            A(f"ds_write_b128 v48, v[32:35] offset:{PB}")
        if k == 8 + f2_at + 1:
            q0_gather()
        if k == 8 + f2_at + 2:
            q0_finish()
    assert f1_at + 3 <= 9 and f2_at + 2 <= att_at
    stamp(2)
    flush(48)
    if qsync:
        A("L_qspin:")
        A(f"ds_read_b32 v21, v13 offset:{SL}")
        A("s_waitcnt lgkmcnt(0)")
        A("v_cmp_ne_u32 vcc, 6, v21")
        A("s_cbranch_vccnz L_qspin")
        stamp(0)
        A("s_branch L_att2")
    stamp(0)

    place("att")
    A("L_att:")
    if endmode:
        A("s_mov_b64 vcc, 0")
    pt(0)
    lwait(16)
    A("s_barrier")
    A("L_att2:")
    pt(1)
    for t in range(3):
        A(f"ds_read_b128 {vr(20+4*t,4)}, v2 offset:{QB+128*t}")
    A(f"s_cmp_ge_u32 s{sW}, 4")
    A("s_cbranch_scc1 L_att_b")

    def score(T):
        o = [f"v_add_f32_dpp v48, v{32+4*T}, v{33+4*T} quad_perm:[0,1,2,3] row_mask:{hex(1<<T)} bank_mask:0xf"]
        if T == 0:
            return o + ["v_add_f32 v50, v32, v33"]
        return o + [f"v_add_f32 v49, v{32+4*T}, v{33+4*T}", "v_max_f32 v50, v50, v49"]

    prd = lambda sp: f"ds_read_b128 {vr(20+4*sp,4)}, v16 offset:{256*sp}"

    def qk_softmax(cls):
        for t in range(3):
            lgk(2 - t)
            A(f"v_smfmac_f32_16x16x64_bf16 v[32:35], {vr(20+4*t,4)}, {vr(KB+8*t,8)}, v1")
        pt(2)
        sal = [f"s_mul_i32 s{sT[1]}, s{sL}, {OP(1)}", f"s_add_u32 s{sT[1]}, s{sT[1]}, s{sLOC}",
               f"s_add_u32 s{sT[3]}, s{sT[1]}, {LSE(0)}"]
        if strict:
            fills = {3: sal[:1], 4: sal[1:2], 5: sal[2:], 7: score(0)[:1], 8: score(0)[1:], 10: score(1)[:1], 11: score(1)[1:]}
        else:
            fills = {6: score(0)[:1], 7: score(0)[1:], 9: score(1)[:1], 10: score(1)[1:2], 11: score(1)[2:]}
        for T in range(1, 4):
            for t in range(3):
                A(f"v_smfmac_f32_16x16x64_bf16 {vr(32+4*T,4)}, {vr(20+4*t,4)}, {vr(KB+24*T+8*t,8)}, v1")
                if 3 * T + t == 11:
                    pt(3)
                    if prio and cls == "b":
                        A("s_setprio 2")
                emit(fills.get(3 * T + t, []))
        emit(score(2))
        if not strict:
            emit(sal)
        sc3 = score(3)
        emit(sc3[1:])
        A(sc3[0])
        emit([f"v_max_f32_dpp v50, v50, v50 {m}" for m in (XOR1, XOR2, HMIR, MIR)])
        A("v_ceil_f32 v50, v50")
        pt(4)
        A("v_sub_f32 v48, v48, v50")
        A("v_exp_f32 v48, v48")
        A(f"s_cmp_lg_u32 s{sL}, 0")
        A("v_cvt_pk_bf16_f32 v49, v48, v13")
        A("ds_write2_b32 v15, v49, v49 offset0:0 offset1:5")
        if cls == "b":
            A(f"ds_write_b32 v10, v50 offset:{MLB}")
        for sp in range(4):
            A(prd(sp))
        if cls == "a":
            A(f"ds_write_b32 v10, v50 offset:{MLB}")
        A("s_cbranch_scc0 L_l0")
        A(f"L_pv_{cls}:")

    lsum = [f"v_add_f32_dpp v51, v48, v48 {XOR1}"] + [f"v_add_f32_dpp v51, v51, v51 {m}" for m in (XOR2, HMIR, MIR)] + [
        "v_add_f32_dpp v51, v51, v51 row_bcast:15 row_mask:0xa bank_mask:0xf", "v_add_f32_dpp v51, v51, v51 row_bcast:31 row_mask:0xc bank_mask:0xf",
        f"ds_write_b32 v10, v51 offset:{MLB+512}"]

    def o_piece(t):
        return [f"v_cvt_pk_bf16_f32 v{52+4*t}, v{52+4*t}, v{53+4*t}", f"v_cvt_pk_bf16_f32 v{54+4*t}, v{54+4*t}, v{55+4*t}",
                f"ds_write2_b32 v17, v{52+4*t}, v{54+4*t} offset0:{32*t} offset1:{32*t+4}"]

    def pv(extra, waits, cls):
        tmaj = tma if cls == "a" else tmb
        order = [(sp, t) for t in range(3) for sp in range(4)] if tmaj else [(sp, t) for sp in range(4) for t in range(3)]
        extra = {k: list(extra.get(k, [])) for k in range(12)}
        if tmaj:
            extra[6] += o_piece(0)[:2]
            extra[7] += o_piece(0)[2:]
            extra[10] += o_piece(1)[:2]
            extra[11] += o_piece(1)[2:]
        for i, (sp, t) in enumerate(order):
            if i in waits:
                lgk(waits[i])
            if i == (3 if tmaj else 9):
                if endmode == 0:
                    A("s_waitcnt vmcnt(6)")
                else:
                    A(f"s_cbranch_vccnz L_l0{cls}")
                    A(f"L_pv3{cls}:")
                stamp(1)
            A(f"v_smfmac_f32_16x16x64_bf16 {vr(52+4*t,4)}, {vr(20+4*sp,4)}, {vr(VB+24*sp+8*t,8)}, v14")
            emit(extra[i])
        return (2,) if tmaj else (0, 1, 2)

    if prio:
        A("s_setprio 1")
    qk_softmax("a")
    emit(lsum[:na])
    pt(5)
    ex = {k: [] for k in range(12)}
    for i, x in enumerate(lsum[na:]):
        ex[min(2 * i, 11)].append(x)
    ex[bar_at].append("s_barrier")
    ex[8].append(f"ds_read_b128 v[40:43], v13 offset:{MLB}")
    ex[9].append(f"ds_read_b128 v[44:47], v13 offset:{MLB+16}")
    ex[10].append(f"ds_read_b64 v[38:39], v12 offset:{MLB}")
    rest = pv(ex, {0: 4, 1: 3, 2: 2, 3: 1, 5: 0} if tma else {0: 4, 3: 0}, "a")
    pt(8)
    if prio and not aprio:
        A("s_setprio 0")
    for t in rest:
        emit(o_piece(t))
    lgk(2 if tma else 3)
    A("v_max3_f32 v40, v40, v41, v42")
    A("v_max3_f32 v43, v43, v44, v45")
    A("v_max3_f32 v40, v40, v46, v47")
    A("v_max_f32 v40, v40, v43")
    A("v_sub_f32 v38, v38, v40")
    A("v_sub_f32 v39, v39, v40")
    A("v_exp_f32 v38, v38")
    A("v_exp_f32 v39, v39")
    A("v_cvt_pk_bf16_f32 v38, v38, v38")
    A("v_cvt_pk_bf16_f32 v39, v39, v39")
    for i in range(3):
        for h in range(2):
            A(f"v_cndmask_b32 v{42+2*i+h}, v13, v{38+h}, s[{TMASK[i]}:{TMASK[i]+1}]")
    A(f"s_cmp_lg_u32 s{sSLOW}, 0")
    A("s_waitcnt lgkmcnt(0)")
    pt(9)
    A("s_barrier")
    pt(11)
    for i in range(3):
        A(f"ds_read_b64_tr_b16 {vr(20+2*i,2)}, v18 offset:{OB+32*i}")
    for i in range(3):
        lgk(2 - i)
        A(f"v_mfma_f32_16x16x16_bf16 v[28:31], {vr(20+2*i,2)}, {vr(42+2*i,2)}, {'v[28:31]' if i else 0}")
    pt(12)
    A("v_cvt_pk_bf16_f32 v28, v28, v29")
    A("v_cvt_pk_bf16_f32 v29, v30, v31")
    lstore([f"buffer_store_dwordx2 v[28:29], v19, {srd(sWS)}, s{sT[1]} offen"], cmp=False)
    pt(13)
    A("s_branch L_attdone")
    A("; ---- waves 4..7 ----")
    place("attb")
    A("L_att_b:")
    hit[0] = prof == 4 or (prof == 3 and (at == 1 or ref > 13))
    qk_softmax("b")
    pt(5)
    emit(lsum[:nb])
    lgk(4)
    pt(6)
    A("s_barrier")
    A(f"ds_read_b32 v40, v11 offset:{MLB}")
    emit(weave(lsum[nb:4], ["v_min_u32 v39, 1, v0", "v_lshlrev_b32 v39, 30, v39", f"s_lshl3_add_u32 s{sT[4]}, s{sC}, s{sT[3]}", f"s_cmp_lg_u32 s{sW}, 7"]))
    if prio:
        A("s_setprio 1")
    pt(7)
    rest = pv({0: [lsum[4]], 2: [lsum[5]], 3: [f"v_max_f32_dpp v42, v40, v40 {XOR1}"], 4: [lsum[6]], 5: [f"v_max_f32_dpp v42, v42, v42 {XOR2}"],
               7: [f"v_max_f32_dpp v42, v42, v42 {HMIR}"], 8: ["v_sub_f32 v40, v40, v42"], 9: ["v_exp_f32 v40, v40"]}, {0: 1, 3: 0}, "b")
    pt(8)
    for t in rest:
        emit(o_piece(t))
    lwait(32)
    pt(9)
    A("s_barrier")
    A("s_cbranch_scc1 L_attdone")
    A(f"ds_read_b32 v41, v11 offset:{MLB+512}")
    A(f"s_cmp_lg_u32 s{sSLOW}, 0")
    A("s_waitcnt lgkmcnt(0)")
    A("v_mul_f32 v43, v40, v41")
    allred8("v_add_f32", 43, 43)
    lstore([f"buffer_store_dwordx2 v[42:43], v39, {srd(sWS)}, s{sT[4]} offen"], cmp=False)
    pt(13)
    A("L_attdone:")
    A(f"s_mov_b32 s{sPUB}, 0")
    if prio:
        A("s_setprio 0")
    stamp(2)
    A(f"s_cmp_ge_u32 s{sRO}, 20")
    A("s_cbranch_scc1 L_notO")

    A(f"s_cmp_lt_u32 s{sW}, 2")
    A("s_cbranch_scc1 L_so_fin")
    A("v_add_u32 v63, s8, v3")
    A(f"s_cmp_lg_u32 s{sL}, 0")
    A("s_cbranch_scc0 L_so_l0")
    A("L_wo_ok:")
    def so_reads(lo, hi):
        for T in range(lo, hi):
            if T:
                A(f"v_xor_b32 v62, {32*T}, v63")
            for q in range(4):
                A(f"ds_read_b64_tr_b16 {vr(24+8*T+2*q,2)}, v{62 if T else 63} offset:{(q>>1)*4096+(q&1)*512}")

    if sob == 3:
        A(f"s_cmp_ge_u32 s{sW}, 4")
        A("s_cbranch_scc1 L_so_b")
        A("s_barrier")
    if sob == 4:
        A(f"s_sub_u32 s{sT[4]}, s{sW}, 4")
        A(f"s_cmp_lt_u32 s{sT[4]}, 3")
        A("s_cbranch_scc1 L_so_b")
        so_reads(0, sobn)
        A("s_barrier")

    def so_shadow(clear=True, lo=0):
        so_reads(lo, 4)
        if clear:
            zero(8, 24)
        A("v_lshl_add_u32 v63, v0, 2, s9")
        if clear and sob == 2:
            A("s_barrier")
        A("s_waitcnt lgkmcnt(0)")
        if clear and sob == 1:
            A("s_barrier")

    def so_check():
        A("s_waitcnt vmcnt(0)")
        A("v_max3_u32 v62, v60, v56, v57")
        A("v_max3_u32 v62, v62, v58, v59")
        A("v_cmp_eq_u32 vcc, -1, v62")

    so_loads = [f"buffer_load_dword v60, v5, {srd(sWS)}, s{sT[3]} offen sc1",
                f"buffer_load_dwordx4 v[56:59], v4, {srd(sWS)}, s{sT[1]} offen sc1"]
    so_mid = poll(so_loads, so_check, (lambda: so_shadow(True, sobn)) if sob == 4 else so_shadow, True, sf & 1)
    pt(20)
    stamp(3)
    mx = [f"v_max_f32_dpp v62, v60, v60 {XOR1}", f"v_max_f32_dpp v62, v62, v62 {XOR2}", f"v_max_f32_dpp v62, v62, v62 {HMIR}", "v_sub_f32 v62, v60, v62"]
    for T in range(4):
        A(f"v_smfmac_f32_16x16x64_bf16 {vr(8+4*T,4)}, v[56:59], {vr(24+8*T,8)}, v1")
        A(mx[T])
    A("v_exp_f32 v62, v62")
    A(f"v_mul_f32_dpp v61, v60, v62 row_ror:8 {FULL}")
    A(f"v_mov_b32_dpp v56, v62 row_newbcast:0 {FULL}")
    A(f"v_mov_b32_dpp v57, v62 row_newbcast:1 {FULL}")
    sm = [f"v_add_f32_dpp v61, v61, v61 {XOR1}", f"v_add_f32_dpp v61, v61, v61 {XOR2}", f"v_add_f32_dpp v61, v61, v61 {HMIR}", f"v_rcp_f32_dpp v61, v61 row_newbcast:0 {FULL}"]
    for T in range(4):
        A(sm[T])
        A(f"v_pk_mul_f32 {vr(8+4*T,2)}, {vr(8+4*T,2)}, v[56:57] op_sel:[0,0] op_sel_hi:[1,0]")
        A(f"v_pk_fma_f32 {vr(8+4*T,2)}, {vr(10+4*T,2)}, v[56:57], {vr(8+4*T,2)} op_sel:[0,1,0] op_sel_hi:[1,1,1]")
    for T in (0, 1, 2, 3):
        A(f"v_add_f32 v{8+T}, v{8+4*T}, v{9+4*T}")
    pt(21)
    emit(red_quad(8))
    A("v_mul_f32 v8, v8, v61")
    pt(22)
    A(f"ds_write_b32 v63, v8 offset:{RB-512}")
    A(f"s_cmp_lg_u32 s{sW}, {99 if tod else 6}")
    lwait(1)
    pt(23)
    A("s_barrier")
    A("s_cbranch_scc1 L_sodone")
    A("L_so_trig:")
    only_lanes(17, 0)
    A(f"s_lshl_b32 s{sT[5]}, s{sL}, 9")
    A(f"s_lshl2_add_u32 s{sT[5]}, s{sRO}, s{sT[5]}")
    A(f"s_add_u32 s{sT[5]}, s{sT[5]}, s{sLOC}")
    A(f"s_add_u32 s{sT[5]}, s{sT[5]}, {XL(0)}")
    lstore([f"buffer_store_dword v17, v17, {srd(sWS)}, s{sT[5]} offen"])
    A("s_branch L_sodone")
    if sob >= 3:
        place("sob")
        A("L_so_b:")
        so_shadow()
        A("s_barrier")
        if dly:
            for i in range(dly.get(1, 0)):
                A("s_nop 3")
                A("s_nop 3")
        emit(so_loads)
        A(f"s_branch {so_mid}")
    A("L_so_l0:")
    zero(8, 24)
    A("s_waitcnt vmcnt(0)")
    if sl0 == 1:
        emit(so_loads)
    A("s_barrier")
    stamp(5, True)
    if sl0 == 0:
        A("s_branch L_wo_ok")
    if sl0 == 2:
        emit(so_loads)
    so_shadow(False)
    A(f"s_branch {so_mid}")
    place("fin")
    A("L_so_fin:")
    A(f"s_cmp_lg_u32 s{sL}, 0")
    A("s_cbranch_scc1 L_so_norst2" if sob else "s_cbranch_scc1 L_so_fin1")
    A(f"s_cmp_lg_u32 s{sW}, 1")
    A("s_cbranch_scc1 L_so_norst")
    A(f"s_mul_i32 s{sT[4]}, s{sR}, 20")
    A(f"s_add_u32 s{sT[4]}, s{sT[4]}, s{sRO}")
    A(f"s_lshl_b32 s{sT[4]}, s{sT[4]}, 10")
    A(f"s_add_u32 s{sT[4]}, s{sT[4]}, {XA(1)}")
    for r in range(20, 24):
        A(f"v_mov_b32 v{r}, -1")
    A("v_lshlrev_b32 v12, 4, v0")
    A(f"buffer_store_dwordx4 v[20:23], v12, {srd(sWS)}, s{sT[4]} offen sc1")
    A("s_waitcnt vmcnt(1)")
    A("s_barrier")
    A("s_waitcnt vmcnt(0)")
    A("s_branch L_so_fin1")
    A("L_so_norst:")
    A("s_waitcnt vmcnt(0)")
    A("L_so_norst2:")
    A("s_barrier")
    A("L_so_fin1:")
    A(f"s_and_b32 s{sT[2]}, s{sRO}, 1")
    A("v_lshlrev_b32 v12, 2, v0")
    A(f"s_lshr_b32 s{sT[5]}, s{sRO}, 1")
    xa_off(sT[4], sT[5], sT[6])
    A(f"s_lshl1_add_u32 s{sT[5]}, s{sR}, s{sT[2]}")
    A(f"s_lshl_b32 s{sT[5]}, s{sT[5]}, 8")
    A(f"s_add_u32 s{sT[4]}, s{sT[4]}, s{sT[5]}")
    A(f"s_lshl_b32 s{sT[5]}, s{sW}, 13")
    A(f"s_add_u32 s{sT[4]}, s{sT[4]}, s{sT[5]}")
    A("s_barrier")
    for i in range(3):
        A(f"ds_read2st64_b32 {vr(20+2*i,2)}, v12 offset0:{RB//256+2*i} offset1:{RB//256+2*i+1}")
    lgk(1)
    A("v_pk_add_f32 v[20:21], v[20:21], v[22:23]")
    A("s_waitcnt lgkmcnt(0)")
    A("v_pk_add_f32 v[20:21], v[20:21], v[24:25]")
    A("v_add_f32 v20, v20, v21")
    pt(24)
    A(f"buffer_store_dword v20, v12, {srd(sWS)}, s{sT[4]} offen sc1")
    pt(25)
    stamp(4)
    if tod:
        A(f"s_cmp_eq_u32 s{sW}, 0")
        A("s_cbranch_scc1 L_so_trig")
    if pads and "q" in pads:
        A("s_branch L_sodone")
    place("q")
    A("L_sodone:")
    A("L_after_role:")
    A(f"s_cmp_lg_u32 s{sL}, 0")
    A("s_cbranch_scc1 L_exit")
    writeback(4)
    if warm_at in (2, 4):
        warm(1)

    def trig_check():
        A("v_max_u32 v44, v44, v45")
        A("v_cmp_eq_u32 vcc, -1, v44")

    def trig_poll(n=2):
        A(f"v_min_u32 v58, {n-1}, v0")
        A("v_lshlrev_b32 v58, 2, v58")
        ld = lambda i: f"buffer_load_dword v{60+i}, v58, {srd(sWS)}, s{sT[5]} offen sc1"
        if td == 1:
            poll([ld(0)], lambda: A("v_cmp_eq_u32 vcc, -1, v60"))
            return
        top, done = new("tp"), new("td")
        for i in range(td - 1):
            A(ld(i))
        A(f"{top}:")
        for i in range(td):
            A(ld((i + td - 1) % td))
            if i == 0:
                A(f"s_sub_u32 s{sCNT}, s{sCNT}, 1")
                A(f"s_cbranch_scc1 {done}t")
            A(f"s_waitcnt vmcnt({td-1})")
            A(f"v_cmp_eq_u32 vcc, -1, v{60+i}")
            A(f"s_cbranch_vccz {done}" if i < td - 1 else f"s_cbranch_vccnz {top}")
        A(f"{done}:")
        ool.append([f"{done}t:", f"s_mov_b32 s{sCNT}, 0", f"s_branch {done}"])

    def q_prep():
        q_operand(sW)
        zero(40, 44)
        only_lanes(56, 4)
        A("v_lshl_or_b32 v56, v0, 4, v56")
        A(f"s_mul_i32 s{sT[2]}, s{sT[0]}, 3072")
        A(f"s_and_b32 s{sT[1]}, s{sC}, 0x1c")
        A(f"s_lshr_b32 s{sT[3]}, s{sW}, 2")
        A(f"s_lshl1_add_u32 s{sT[1]}, s{sT[3]}, s{sT[1]}")
        A(f"s_lshl_b32 s{sT[1]}, s{sT[1]}, 7")
        A(f"s_add_u32 s{sT[1]}, s{sT[1]}, s{sT[2]}")
        A(f"s_and_b32 s{sT[3]}, s{sW}, 3")
        A(f"s_lshl2_add_u32 s{sT[1]}, s{sT[3]}, s{sT[1]}")
        A(f"s_add_u32 s{sT[1]}, s{sT[1]}, s{sLOC}")
        A(f"s_add_u32 s{sT[6]}, s{sT[1]}, {QP1 - 8*128}")
        if not qa:
            A("s_waitcnt lgkmcnt(0)")

    if qa:
        A(f"s_cmp_ge_u32 s{sW}, 4")
        A("s_cbranch_scc1 L_q_noac")
    att_consts()
    A("L_q_noac:")
    A(f"s_and_b32 s{sT[0]}, s{sC}, 3")
    A(f"s_cmp_lg_u32 s{sPUB}, 0")
    A("s_cbranch_scc1 L_q_late")
    q_prep()
    A(f"s_cmp_lt_u32 s{sW}, 4")
    A("s_cbranch_scc1 L_q_wait")
    A(f"s_cmp_eq_u32 s{sW}, 7")
    A("s_cbranch_scc1 L_q_trig")
    A(f"s_and_b32 s{sT[2]}, s{sC}, 0x1c")
    A(f"s_cmp_eq_u32 s{sT[2]}, 4")
    A("s_cbranch_scc1 L_q_trig2" if qa else "s_cbranch_scc1 L_q_wait")
    A(f"s_lshl_b32 s{sT[2]}, s{sW}, 4")
    A(f"s_addk_i32 s{sT[2]}, -64")
    A(f"v_and_or_b32 v8, v0, 15, s{sT[2]}")
    A("v_cmp_gt_u32 vcc, 40, v8")
    A(f"s_mul_i32 s{sT[3]}, s{sT[0]}, 40")
    A(f"v_add_u32 v8, s{sT[3]}, v8")
    A("v_lshrrev_b32 v9, 4, v8")
    A("v_and_b32 v57, 12, v9")
    A("v_add_u32 v9, v9, v57")
    A("v_and_b32 v8, 15, v8")
    A("v_and_or_b32 v8, v0, 48, v8")
    A("v_lshlrev_b32 v8, 4, v8")
    A("v_lshl_or_b32 v8, v9, 11, v8")
    A(f"v_mov_b32 v9, {OOB}")
    A("v_cndmask_b32 v8, v9, v8, vcc")
    x64_addr(9, 57)
    A(f"s_lshl_b32 s{sT[2]}, s{sT[2]}, 3")
    A(f"v_add_u32 v9, s{sT[2]}, v9")
    A(f"s_add_u32 s{sT[4]}, s{sNEAR}, {XM}")
    A("s_barrier")
    pt(49)
    stamp(8)
    def q_post():
        emit(red_quad(44))
        A("v_cvt_pk_bf16_f32 v45, v44, v44")
        A(f"ds_write_b16 v9, v45 offset:{XB}")

    gather64(2, sT[4], att_consts if qa else None, q_post if lc & 1 else None)
    stamp(9)
    pt(50)
    if not lc & 1:
        q_post()
    A("L_q_bar:")
    A(f"s_cmp_lt_u32 s{sC}, 8")
    lwait(8)
    pt(51)
    A("s_barrier")
    A("s_cbranch_scc1 L_hq")
    for kb in range(3):
        A(f"ds_read_b128 {vr(44+4*kb,4)}, v2 offset:{XB+128*kb}")
    A(f"s_cmp_lg_u32 s{sSLOW}, 0")
    q_matvec(44, True)
    pt(52)
    A("v_add_f32 v40, v40, v41")
    lstore([f"buffer_store_dword v40, v56, {srd(sWS)}, s{sT[6]} offen"], cmp=False)
    pt(53)
    stamp(10)

    A("L_hq:")
    A(f"s_mov_b32 s{sL}, 1")
    A(f"s_cmp_ge_u32 s{sW}, 3")
    A("s_cbranch_scc1 L_hq_idle")
    A("v_lshrrev_b32 v8, 4, v0")
    A("v_mul_u32_u24 v8, 3072, v8")
    A("v_and_b32 v9, 15, v0")
    A("v_lshlrev_b32 v9, 4, v9")
    A("v_add_u32 v8, v8, v9")
    A("v_and_b32 v9, 7, v0")
    A("v_lshlrev_b32 v9, 2, v9")
    A(f"s_lshr_b32 s{sT[0]}, s{sC}, 3")
    A(f"s_mul_i32 s{sT[0]}, s{sT[0]}, 3")
    A(f"s_add_u32 s{sT[0]}, s{sT[0]}, s{sW}")
    A(f"s_lshl_b32 s{sT[0]}, s{sT[0]}, 8")
    A(f"s_add_u32 s{sT[0]}, s{sT[0]}, s{sLOC}")
    A(f"s_add_u32 s{sT[0]}, s{sT[0]}, {QP1}")
    A(f"s_add_u32 s{sT[5]}, s{sLOC}, {QS1}")

    def hq_shadow():
        A(f"s_lshl_b32 s{sT[1]}, s{sW}, 8")
        A(f"v_lshl_add_u32 v24, v0, 2, s{sT[1]}")
        A(f"ds_read_b32 v24, v24 offset:{CS}")
        A(f"v_mov_b32 v27, {hex(f2u(1/640))}")
        A(f"v_mov_b32 v28, {hex(f2u(1e-5))}")
        att_zero()
        A("s_waitcnt lgkmcnt(0)")

    hq_loads = [f"buffer_load_dword v25, v9, {srd(sWS)}, s{sT[5]} offen sc1",
                f"buffer_load_dwordx4 v[{48 if hqd > 1 else 20}:{51 if hqd > 1 else 23}], v8, {srd(sWS)}, s{sT[0]} offen sc1"]

    def hq_check():
        A(f"s_waitcnt vmcnt({2*(hqd-1)})")
        if hqd > 1:
            A("v_mov_b64 v[20:21], v[48:49]")
            A("v_mov_b64 v[22:23], v[50:51]")
        A(f"v_add_f32_dpp v26, v25, v25 {XOR2}")
        A("v_maximum3_f32 v30, v20, v21, v22")
        A("v_maximum3_f32 v30, v30, v23, v26")
        A("v_cmp_u_f32 vcc, v30, v30")

    if hqd > 1:
        emit(hq_loads)
        hq_shadow()
        for i in range(hqd - 2):
            emit(hq_loads)
        poll(hq_loads, hq_check, None, True)
    else:
        poll(hq_loads, hq_check, hq_shadow, True, sf & 2)
    pt(60)
    stamp(11)
    emit(weave(red_quad(20), [f"v_add_f32_dpp v26, v26, v26 row_ror:4 {FULL}",
                              f"v_mul_f32_dpp v29, v26, v27 quad_perm:[1,1,1,1] {FULL}",
                              f"v_fmac_f32_dpp v28, v26, v27 quad_perm:[0,0,0,0] {FULL}"] + ln_rstd(28, 29)))
    A("v_fma_f32 v20, -v29, v24, v20")
    A(f"v_mul_f32 v28, {hex(f2u(QSCALE))}, v28")
    A("v_mul_f32 v20, v20, v28")
    A("v_cvt_pk_bf16_f32 v20, v20, v20")
    pt(61)
    A(f"ds_write_b16 v6, v20 offset:{QB}")
    if hqd > 1:
        A("s_waitcnt vmcnt(0)")
    flush(0)
    stamp(0)
    A("s_branch L_att")
    place("hi")
    A("L_hq_idle:")
    if x_dirty:
        A(f"s_lshl3_add_u32 s{sM}, s2, s{sW}")
        A(f"s_lshl_b32 s{sM}, s{sM}, 10")
        A(f"s_add_u32 s{sM}, s{sM}, 0x400000")
        A(f"v_lshl_add_u32 v20, v0, 4, s{sM}")
        A(f"s_cmp_lt_u32 s{sW}, {8 - x_dirty}")
        A("s_cbranch_scc1 L_nodirty")
        A(f"global_store_dwordx4 v20, v[24:27], s[{sWS}:{sWS+1}]")
        A("L_nodirty:")
    writeback(1)
    att_zero()
    flush(0)
    A("s_branch L_att")

    place("ql")
    A("L_q_late:")
    A("s_barrier")
    q_prep()
    A("s_branch L_q_bar")
    place("qt")
    A("L_q_trig:")
    A(f"s_mul_i32 s{sT[5]}, s{sT[0]}, 40")
    A(f"s_add_u32 s{sT[5]}, s{sT[5]}, s{sLOC}")
    A(f"s_add_u32 s{sT[5]}, s{sT[5]}, {XL(1)}")
    trig_poll(10)
    A("L_q_trig2:")
    A("s_barrier")
    if qa:
        att_consts()
    A("s_waitcnt vmcnt(0)")
    A("s_branch L_q_bar")
    place("qw")
    A("L_q_wait:")
    A("s_barrier")
    A(f"s_and_b32 s{sT[2]}, s{sC}, 0x1c")
    A(f"s_lshl1_add_u32 s{sT[2]}, s{sT[2]}, s{sW}")
    A(f"s_cmp_lg_u32 s{sT[2]}, 3")
    A("s_cbranch_scc1 L_q_bar")
    x_sums_prep(QS1)
    A("s_waitcnt lgkmcnt(0)")
    A("s_barrier")
    x_sums()
    A("s_branch L_hq")

    place("m")
    A("L_notO:")
    A(f"s_cmp_ge_u32 s{sRO}, 30")
    A("s_cbranch_scc1 L_after_role")
    A(f"s_cmp_lg_u32 s{sL}, 0")
    A("s_cbranch_scc1 L_m_now2")
    if mshift == 1 and w1e < 2:
        late_half(2, 34)
    A(f"s_waitcnt vmcnt({0 if mshift == 2 else 3})" if mshift else "s_waitcnt vmcnt(0)")
    if mshift == 2:
        late_half(2, 34)
    if mshift:
        A("s_barrier")
    A("L_m_now2:")
    A(f"s_sub_u32 s{sT[6]}, s{sRO}, 20")
    A(f"s_lshl_b32 s{sT[5]}, s{sL}, 9")
    A(f"s_lshl3_add_u32 s{sT[5]}, s{sT[6]}, s{sT[5]}")
    A(f"s_add_u32 s{sT[5]}, s{sT[5]}, s{sLOC}")
    A(f"s_add_u32 s{sT[5]}, s{sT[5]}, {XL(0)}")
    A(f"s_lshl_b32 s{sT[3]}, s{sL}, 8")
    A(f"s_add_u32 s{sT[3]}, s{sT[3]}, s{sLOC}")
    A(f"s_add_u32 s{sT[3]}, s{sT[3]}, {HS(0)}")
    only_lanes(17, 0)
    A(f"s_cmp_ge_u32 s{sW}, 6")
    A("s_cbranch_scc1 L_m_x")
    if not mshift:
        A(f"s_cmp_lg_u32 s{sL}, 0")
        A("s_cbranch_scc1 L_m_loaded")
        A("s_barrier")
        A("L_m_loaded:")
    A(f"s_lshr_b32 s{sT[1]}, s{sW}, 1")
    A(f"s_lshl_b32 s{sT[1]}, s{sT[1]}, 13")
    A(f"s_add_u32 s{sT[1]}, s{sT[1]}, {W1L}")
    A(f"s_and_b32 s{sT[2]}, s{sW}, 1")
    A(f"s_lshl_b32 s{sT[2]}, s{sT[2]}, 6")
    A(f"v_xor_b32 v10, s{sT[2]}, v3")
    A(f"v_add_u32 v10, s{sT[1]}, v10")
    A("v_xor_b32 v11, 32, v10")
    for e in range(2):
        for q in range(4):
            A(f"ds_read_b64_tr_b16 {vr(36+8*e+2*q,2)}, v{10+e} offset:{(q>>1)*4096+(q&1)*512}")
    zero(52, 60)
    only_lanes(9, 4)
    A("v_lshl_or_b32 v9, v0, 4, v9")
    A("v_lshrrev_b32 v10, 4, v0")
    A("v_mul_u32_u24 v10, 768, v10")
    A("v_and_b32 v11, 15, v0")
    A("v_lshl_add_u32 v10, v11, 4, v10")
    A("v_lshrrev_b32 v8, 5, v0")
    A("v_lshl_or_b32 v8, v8, 30, v10")
    A(f"s_lshl_b32 s{sT[0]}, s{sW}, 8")
    A(f"s_add_u32 s{sT[0]}, s{sT[0]}, s{sLOC}")
    A(f"s_mul_i32 s7, s{sT[6]}, 768")
    A(f"s_lshr_b32 s{sT[1]}, s{sW}, 1")
    A(f"s_lshl_b32 s{sT[1]}, s{sT[1]}, 8")
    A(f"s_add_u32 s7, s7, s{sT[1]}")
    A(f"s_and_b32 s{sT[1]}, s{sW}, 1")
    A(f"s_lshl3_add_u32 s7, s{sT[1]}, s7")
    A(f"s_add_u32 s7, s7, s{sLOC}")

    def h_loads(d):
        return [f"buffer_load_dwordx4 {vr(d,4)}, v10, {srd(sWS)}, s{sT[1]} offen sc1",
                f"buffer_load_dwordx4 {vr(d+4,4)}, v10, {srd(sWS)}, s{sT[1]} offen offset:3072 sc1",
                f"buffer_load_dwordx4 {vr(d+8,4)}, v8, {srd(sWS)}, s{sT[2]} offen sc1"]

    def h_sum(d):
        A("s_waitcnt vmcnt(1)")
        for h in range(2):
            A(f"v_pk_add_f32 {vr(d+2*h,2)}, {vr(d+2*h,2)}, {vr(d+4+2*h,2)}")
        A("s_waitcnt vmcnt(0)")
        for h in range(2):
            A(f"v_pk_add_f32 {vr(d+2*h,2)}, {vr(d+2*h,2)}, {vr(d+8+2*h,2)}")

    A(f"s_cmp_lg_u32 s{sL}, 0")
    A("s_cbranch_scc1 L_m_havecs")
    for r in range(60, 64):
        A(f"v_mov_b32 v{r}, 0x3f803f80")
    A(f"s_add_u32 s{sT[4]}, s7, {HC}")
    A(f"s_add_u32 s{sT[1]}, s{sT[0]}, {HC}")
    A(f"s_add_u32 s{sT[2]}, s{sT[0]}, {HC+6144}")
    A("s_waitcnt lgkmcnt(0)")
    A("v_smfmac_f32_16x16x64_bf16 v[52:55], v[60:63], v[36:43], v1")
    A("v_smfmac_f32_16x16x64_bf16 v[56:59], v[60:63], v[44:51], v1")
    A("v_add_f32 v60, v52, v53")
    A("v_add_f32 v61, v56, v57")
    lstore([f"buffer_store_dwordx2 v[60:61], v9, {srd(sWS)}, s{sT[4]} offen"])
    zero(52, 60)
    if bearly:
        A("s_waitcnt vmcnt(1)")
        A("s_barrier")
    A(f"s_cmp_ge_u32 s{sW}, 3")
    A("s_cbranch_scc1 L_m_gotcs")

    def hc_check():
        h_sum(12)
        A("v_maximum3_f32 v16, v12, v13, v14")
        A("v_cmp_u_f32 vcc, v16, v15")

    poll(h_loads(12), hc_check, None, True)
    emit(red_quad(12))
    A(f"s_lshl_b32 s{sT[1]}, s{sW}, 8")
    A(f"v_lshl_add_u32 v13, v0, 2, s{sT[1]}")
    A(f"ds_write_b32 v13, v12 offset:{C1}")
    A("L_m_gotcs:")
    if mshift and not bearly:
        A("s_waitcnt vmcnt(0)")
        A("s_barrier")
    if pads and "m2" in pads:
        A("s_branch L_m_havecs")
    place("m2")
    A("L_m_havecs:")
    A(f"s_and_b32 s6, s{sW}, 3")
    A("s_lshl_b32 s6, s6, 5")
    A("v_xor_b32 v11, s6, v3")
    A(f"v_add_u32 v11, {W2L}, v11")
    for kb in range(3):
        for q in range(4):
            A(f"ds_read_b64_tr_b16 {vr(12+8*kb+2*q,2)}, v11 offset:{kb*8192+(q>>1)*4096+(q&1)*512}")
    A("v_and_b32 v11, 7, v0")
    A("v_lshlrev_b32 v11, 4, v11")
    A(f"v_mov_b32 v60, {OOB}")
    A("v_cmp_gt_u32 vcc, 80, v11")
    A(f"s_mul_i32 s{sT[4]}, s{sL}, {HP(1)-HP(0)}")
    A(f"s_add_u32 s{sT[4]}, s{sT[4]}, {HP(0)}")
    A("v_cndmask_b32 v11, v60, v11, vcc")
    A(f"s_add_u32 s7, s7, s{sT[4]}")
    A(f"s_add_u32 s{sT[1]}, s{sT[0]}, s{sT[4]}")
    A(f"s_add_u32 s{sT[2]}, s{sT[1]}, 6144")
    A(f"s_mul_i32 s{sM}, s{sL}, 10")
    A(f"s_add_u32 s{sM}, s{sM}, s{sT[6]}")
    xm_off(sT[4], sM)
    A(f"s_lshl2_add_u32 s{sM}, s{sR}, s{sW}")
    A(f"s_lshl_b32 s{sM}, s{sM}, 6")
    A(f"s_add_u32 s{sT[4]}, s{sT[4]}, s{sM}")
    A(f"s_lshl3_add_u32 s{sT[5]}, s{sT[6]}, s{sT[5]}")
    A(f"s_lshl2_add_u32 s{sT[5]}, s{sW}, s{sT[5]}")
    A(f"s_add_u32 s{sT[5]}, s{sT[5]}, 256")
    A(f"s_lshl_b32 s{sT[0]}, s{sW}, 8")
    A(f"s_cmp_eq_u32 s{sR}, 0")
    A(f"s_cselect_b64 s[{sM}:{sM+1}], 0, -1")
    A("s_waitcnt vmcnt(0) lgkmcnt(0)")
    A("v_and_b32 v4, 0xffff0000, v4")
    A("v_and_b32 v5, 0xffff0000, v5")
    A(f"s_cmp_lg_u32 s{sSLOW}, 0")
    A("s_barrier")
    A(f"ds_read_b128 v[60:63], v2 offset:{XS}")
    A("s_waitcnt lgkmcnt(0)")
    pt(33)
    A("v_smfmac_f32_16x16x64_bf16 v[52:55], v[60:63], v[36:43], v1")
    A("v_smfmac_f32_16x16x64_bf16 v[56:59], v[60:63], v[44:51], v1")
    A("v_add_f32 v60, v52, v53")
    A("v_add_f32 v61, v56, v57")
    lstore([f"buffer_store_dwordx2 v[60:61], v9, {srd(sWS)}, s7 offen"], cmp=False)
    pt(34)
    stamp(5)

    def hh_shadow():
        A("v_and_or_b32 v56, v6, 31, s6")
        A(f"ds_read_u16 v52, v56 offset:{XS}")
        A(f"v_lshl_add_u32 v58, v0, 2, s{sT[0]}")
        A(f"ds_read_b32 v58, v58 offset:{C1}")
        A("v_mov_b32 v53, 0")
        A("v_mov_b32 v54, 0")
        A("v_mov_b32 v55, 0")
        A("v_and_b32 v9, 15, v0")
        A("v_lshlrev_b32 v9, 2, v9")
        A("v_and_b32 v57, 16, v0")
        A("v_lshl_or_b32 v9, v57, 9, v9")
        A("v_and_b32 v57, 32, v0")
        A("v_lshl_or_b32 v9, v57, 25, v9")
        only_lanes(56, 0)
        A("v_mov_b32 v57, 0")
        A("s_waitcnt lgkmcnt(0)")
        A("v_lshlrev_b32 v52, 16, v52")
        A("v_add_f32 v52, v52, v5")
        A(f"v_cndmask_b32 v52, v52, v53, s[{sM}:{sM+1}]")

    def hh_check():
        A("s_waitcnt vmcnt(3)")
        A("v_pk_add_f32 v[48:49], v[48:49], v[50:51]")
        h_sum(36)
        A("v_maximum3_f32 v40, v48, v49, v36")
        A("v_maximum3_f32 v41, v37, v38, v39")
        A("v_cmp_u_f32 vcc, v40, v41")

    A(f"s_cmp_ge_u32 s{sW}, 3")
    A("s_cbranch_scc1 L_m_nogelu")
    poll([f"buffer_load_dwordx4 v[48:51], v11, {srd(sWS)}, s{sT[3]} offen sc1"] + h_loads(36), hh_check, hh_shadow, True, sf & 4)
    pt(40)
    stamp(6)
    k0 = -2.0 * math.sqrt(2.0 / math.pi) * math.log2(math.e)
    emit(weave(ln_mean(49, 3), ln_sq(48, 3), red_quad(36)))
    emit(weave(ln_rstd(48, 49), ["v_fma_f32 v36, -v49, v58, v36", f"v_mov_b32 v38, {hex(f2u(k0))}"]))
    pt(41)
    A("v_fma_f32 v36, v36, v48, v4")
    A("v_mul_f32 v37, v36, v36")
    A(f"v_fmamk_f32 v37, v37, {hex(f2u(k0*0.044715))}, v38")
    A("v_mul_f32 v37, v37, v36")
    A("v_exp_f32 v37, v37")
    A("v_add_f32 v37, 1.0, v37")
    A("v_rcp_f32 v37, v37")
    A("v_mul_f32 v36, v36, v37")
    A("v_cvt_pk_bf16_f32 v36, v36, v36")
    pt(42)
    A(f"ds_write_b16 v6, v36 offset:{HB}")
    lwait(4)
    A("L_m_hbar:")
    A("s_barrier")
    pt(43)
    for kb in range(3):
        A(f"ds_read_b128 {vr(36+4*kb,4)}, v2 offset:{HB+128*kb}")
    if tm == 1:
        lstore([f"buffer_store_dword v57, v56, {srd(sWS)}, s{sT[5]} offen"])
    for kb in range(3):
        lgk(2-kb)
        A(f"v_smfmac_f32_16x16x64_bf16 v[52:55], {vr(36+4*kb,4)}, {vr(12+8*kb,8)}, v1")
    pt(44)
    if tl == 2:
        A(f"s_cmp_eq_u32 s{sL}, 0")
        A(f"s_cselect_b32 s{sT[5]}, {OOB}, s{sT[5]}")
        lstore([f"buffer_store_dword v57, v56, {srd(sWS)}, s{sT[5]} offen"])
    if tm == 2:
        lstore([f"buffer_store_dword v57, v56, {srd(sWS)}, s{sT[5]} offen"])
    A("v_add_f32 v52, v52, v53")
    A(f"buffer_store_dword v52, v9, {srd(sWS)}, s{sT[4]} offen sc1")
    pt(45)
    if tl == 1:
        A(f"s_cmp_eq_u32 s{sL}, 0")
        A("s_cbranch_scc1 L_m_notl")
        lstore([f"buffer_store_dword v57, v56, {srd(sWS)}, s{sT[5]} offen"])
        A("L_m_notl:")
    if tm == 0:
        lstore([f"buffer_store_dword v57, v56, {srd(sWS)}, s{sT[5]} offen"])
    stamp(7)
    A(f"s_mov_b32 s{sPUB}, 1")
    A("s_branch L_after_role")
    place("ng")
    A("L_m_nogelu:")
    hh_shadow()
    A(f"s_cmp_eq_u32 s{sW}, 3")
    A("s_cbranch_scc1 L_m_hbar")
    if tm == 3:
        A("v_mov_b64 v[52:53], 0")
        A(f"s_addk_i32 s{sT[5]}, -16")
        A(f"s_cmp_eq_u32 s{sW}, 4")
        A(f"s_cselect_b32 s{sT[5]}, s{sT[5]}, {OOB}")
        if tl:
            A(f"s_cmp_eq_u32 s{sL}, 0")
            A(f"s_cselect_b32 s{sT[5]}, s{sT[5]}, {OOB}")
        A(f"s_cmp_lg_u32 s{sSLOW}, 0")
    A("s_barrier")
    if tm == 3:
        lstore([f"buffer_store_dwordx4 v[52:55], v56, {srd(sWS)}, s{sT[5]} offen"], cmp=False)
    A("s_branch L_after_role")
    place("x6")
    A("L_m_x:")
    A(f"s_cmp_eq_u32 s{sW}, 7")
    A("s_cbranch_scc1 L_m_x7")
    A(f"s_lshl3_add_u32 s{sT[2]}, s{sT[6]}, s{sT[3]}")
    A("v_and_b32 v8, 1, v0")
    A(f"v_mul_u32_u24 v8, {XB+384-XS-16}, v8")
    A("v_add_u32 v8, v8, v2")
    A(f"s_cmp_lg_u32 s{sL}, 0")
    A("s_cbranch_scc1 L_m_x6")
    A("s_waitcnt vmcnt(0)")
    A("s_barrier")
    A("L_m_x6:")
    A(f"s_cmp_lg_u32 s{sSLOW}, 0")
    A("s_barrier")
    A(f"ds_read_b128 v[20:23], v8 offset:{XS}")
    A(f"ds_read_b128 v[24:27], v8 offset:{XS+16}")
    lgk(1)
    A("v_mfma_f32_16x16x32_bf16 v[28:31], v[20:23], v[20:23], 0")
    A("s_waitcnt lgkmcnt(0)")
    A("v_mfma_f32_16x16x32_bf16 v[28:31], v[24:27], v[24:27], v[28:31]")
    lstore([f"buffer_store_dwordx2 v[28:29], v17, {srd(sWS)}, s{sT[2]} offen"], cmp=False)
    A("s_barrier")
    A("s_branch L_after_role")
    place("x7")
    A("L_m_x7:")
    A("v_lshlrev_b32 v8, 4, v0")
    A("v_and_b32 v10, 15, v0")
    A("v_lshrrev_b32 v9, 4, v0")
    A("v_lshl_or_b32 v10, v10, 2, v9")
    A("v_lshlrev_b32 v10, 1, v10")
    A(f"s_lshl_b32 s{sT[1]}, s{sT[6]}, 7")
    A(f"s_cmp_lg_u32 s{sL}, 0")
    A("s_cbranch_scc1 L_m_x1")
    A("v_mov_b32 v44, v4")
    A("s_waitcnt vmcnt(0)")
    A("s_barrier")
    A("s_branch L_m_x2")
    place("x1")
    A("L_m_x1:")
    xm_off(sT[4], sT[6])
    A(f"s_add_u32 s{sT[4]}, s{sT[4]}, s{sNEAR}")
    gather64(2, sT[4])
    emit(red_quad(44))
    A("v_cvt_pk_bf16_f32 v44, v44, v44")
    A("L_m_x2:")
    if xl:
        trig_poll()
    A("v_lshlrev_b32 v11, 16, v44")
    x64_addr(9, 12)
    xa_off(sT[4], sT[6], sT[0])
    A(f"s_add_u32 s{sT[4]}, s{sT[4]}, s{sNEAR}")
    if to < 2 and not xl:
        trig_poll()
    stamp(3)
    pt(29)
    def xa_post():
        emit(red_quad(44))
        A("v_add_f32 v44, v44, v11")
        A("v_cvt_pk_bf16_f32 v45, v44, v44")
        pt(31)
        A(f"ds_write_b16 v9, v45 offset:{XS}")

    gather64(4, sT[4], None, xa_post if lc & 2 else None)
    pt(30)
    stamp(4)
    if prof == 2:
        A(f"s_cmp_lg_u32 s{sL}, 0")
        A("s_cbranch_scc1 L_p2")
        stamp(4, True)
        A("L_p2:")
    if d_dbg:
        A(f"s_cmp_lg_u32 s{sL}, 0")
        A("s_cbranch_scc1 L_dbg1")
        A("s_memrealtime s[96:97]")
        A("L_dbg1:")
    if not lc & 2:
        xa_post()
    lwait(2)
    pt(32)
    A("s_barrier")
    def fin_addr():
        A(f"s_add_u32 s{sT[0]}, s{sT[6]}, 10")
        xm_off(sT[4], sT[0])
        A(f"s_add_u32 s{sT[4]}, s{sT[4]}, s{sNEAR}")

    if touch:
        A(f"s_cmp_le_u32 s{sL}, s{sR}")
        A("s_cbranch_scc1 L_notouch")
        A(f"buffer_load_ushort v12, v10, {srd(sOUT)}, s{sT[1]} offen")
        A("L_notouch:")
    if not fl:
        fin_addr()
    A(f"s_lshr_b32 s{sT[5]}, s{sT[1]}, 3")
    A(f"s_add_u32 s{sT[5]}, s{sT[5]}, {XL(3)}")
    A(f"s_cmp_gt_u32 s{sL}, s{sR}")
    A("s_barrier")
    A("s_cbranch_scc0 L_after_role")
    if not tf:
        trig_poll()
    if fl:
        fin_addr()
    stamp(8)
    gather64(2, sT[4])
    emit(red_quad(44))
    A("v_cvt_pk_bf16_f32 v44, v44, v44")
    dm(300)
    A(f"buffer_store_short v44, v10, {srd(sOUT)}, s{sT[1]} offen {('', 'sc1', 'nt', 'sc0 sc1')[outpol]}".strip())
    if d_b == 301:
        A("s_waitcnt vmcnt(0)")
    dm(301)
    if d_dbg:
        A("s_memrealtime s[98:99]")
        A("s_waitcnt lgkmcnt(0)")
        if d_dbg < 5:
            if d_dbg == 4:
                A("s_sub_u32 s92, s98, s96")
            elif d_dbg == 3 and d_b == 200:
                A("s_sub_u32 s92, s96, s100")
            else:
                A(f"s_sub_u32 s92, s{ {1: 98, 2: 96, 3: 94}[d_dbg] }, s100")
        else:
            A("v_lshlrev_b32 v20, 4, v0")
            A(f"v_add_u32 v20, {PROF}, v20")
            A(f"global_load_dwordx4 v[24:27], v20, s[{sWS}:{sWS+1}] sc1")
            A("s_waitcnt vmcnt(0)")
            for r in range(24, 28):
                A(f"v_sub_u32 v{r}, s98, v{r}")
            A("v_max3_u32 v28, v24, v25, v26")
            A("v_max_u32 v28, v28, v27")
            A("v_min3_u32 v29, v24, v25, v26")
            A("v_min_u32 v29, v29, v27")
            for m in (XOR1, XOR2, HMIR, MIR, "row_bcast:15 row_mask:0xa bank_mask:0xf", "row_bcast:31 row_mask:0xc bank_mask:0xf"):
                A(f"v_max_u32_dpp v28, v28, v28 {m}")
                A(f"v_min_u32_dpp v29, v29, v29 {m}")
            A("v_readlane_b32 s92, v28, 63")
            A("v_readlane_b32 s93, v29, 63")
            if d_dbg == 6:
                A("s_sub_u32 s92, s92, s93")
                A("s_lshl_b32 s92, s92, 2")
            if d_dbg == 7:
                A(f"s_mov_b32 s92, {d_fix}")
        if d_dbg in (1, 2, 3, 4):
            A(f"s_lshl_b32 s92, s92, {d_sh}")
        if d_wb:
            A("buffer_wbl2 sc1")
        A("s_min_u32 s92, s92, 30000")
        A("L_echo:")
        A("s_memrealtime s[96:97]")
        A("s_waitcnt lgkmcnt(0)")
        A("s_sub_u32 s96, s96, s98")
        A("s_cmp_lt_u32 s96, s92")
        A("s_cbranch_scc1 L_echo")
    stamp(9, True)
    A("s_branch L_exit")

    A("L_w7:")
    A("v_mov_b32 v59, 0x3f803f80")
    A("v_subrev_u32 v60, 8, v0")
    A("v_cmp_gt_u32 vcc, 40, v60")
    A("v_lshlrev_b32 v14, 3, v0")
    A("v_cndmask_b32 v60, 0, v59, vcc")
    A("v_mov_b32 v61, v60")
    A(f"ds_write_b64 v14, v[60:61] offset:{XB+320}")
    A("v_mov_b32 v60, 0")
    A("v_mov_b32 v61, 0")
    A(f"ds_write_b64 v60, v[60:61] offset:{SL}")
    A("v_mov_b32 v61, -1")
    A(f"ds_write2_b32 v60, v61, v61 offset0:{(SL+12)//4} offset1:{(SL+16)//4}")
    xb_addr(14, 13)
    for i in range(5):
        A(f"ds_write_b32 v14, v{52+i} offset:{XB+64*i}")
    A("s_waitcnt lgkmcnt(0)")
    A("s_branch L_w7back")

    A("L_w3:")
    A("s_cmp_ge_u32 s2, 48")
    A("s_cbranch_scc1 L_w3flag")
    A(f"s_lshl_b32 s{sT[4]}, s2, 11")
    A(f"s_add_u32 s{sT[4]}, s{sT[4]}, {XA(0)}")
    A(f"s_add_u32 s{sT[2]}, s{sLOC}, {F2}")
    A("s_cmp_lt_u32 s2, 40")
    A(f"s_cselect_b32 s{sT[2]}, s{sT[4]}, s{sT[2]}")
    for r in range(16, 20):
        A(f"v_mov_b32 v{r}, -1")
    A("v_lshlrev_b32 v15, 4, v0")
    A(f"buffer_store_dwordx4 v[16:19], v15, {srd(sWS)}, s{sT[2]} offen sc1")
    A("s_cbranch_scc0 L_w3flag")
    A(f"buffer_store_dwordx4 v[16:19], v15, {srd(sWS)}, s{sT[2]} offen offset:1024 sc1")
    A("L_w3flag:")
    A(f"s_lshr_b32 s3, s{sC}, 3")
    A("s_cselect_b32 s3, s3, 3")
    A(f"s_lshl_b32 s{sT[4]}, s{sR}, 5")
    A(f"s_add_u32 s{sT[4]}, s{sT[4]}, s{sC}")
    A(f"s_and_b32 s{sT[1]}, s{sC}, 3")
    A(f"s_lshl_b32 s{sT[1]}, s{sT[1]}, 3")
    A(f"s_lshl_b32 s{sT[2]}, s{sFB}, s{sT[1]}")
    A(f"s_and_b32 s{sT[4]}, s{sT[4]}, 0xfc")
    A(f"v_mov_b32 v62, s{sT[2]}")
    A(f"v_mov_b32 v63, s{sT[4]}")
    if d_dbg >= 5:
        A("s_lshl_b32 s91, s2, 2")
        A(f"s_add_u32 s91, s91, {PROF}")
        A("v_mov_b32 v20, s91")
        A("v_mov_b32 v21, s100")
        A(f"global_store_dword v20, v21, s[{sWS}:{sWS+1}] sc1")
    A("s_branch L_w3back")

    if woe:
        A("L_woe:")
        keep, nstep[0] = nstep[0], wstep
        if woe == 1:
            late_half(0, 20)
        wait(0)
        late_half(1, 20)
        wait(0)
        nstep[0] = keep
        A("s_branch L_nowq2")
    A("L_mconst:")
    A(f"s_sub_u32 s{sT[6]}, s{sRO}, 20")
    A("v_and_b32 v36, 15, v0")
    A(f"s_cmp_eq_u32 s{sW}, 7")
    A("s_cbranch_scc1 L_mconst7")
    A("v_lshlrev_b32 v36, 1, v36")
    A("v_lshlrev_b32 v37, 1, v0")
    A(f"s_mul_i32 s{sT[4]}, s{sR}, 384")
    A(f"s_lshl_b32 s{sT[5]}, s{sW}, 7")
    A(f"s_add_u32 s{sT[4]}, s{sT[4]}, s{sT[5]}")
    A(f"buffer_load_short_d16_hi v4, v37, {srd(sB1)}, s{sT[4]} offen")
    A(f"s_lshl2_add_u32 s{sT[4]}, s{sT[6]}, s{sW}")
    A(f"s_lshl_b32 s{sT[4]}, s{sT[4]}, 5")
    A(f"buffer_load_short_d16_hi v5, v36, {srd(sB2)}, s{sT[4]} offen")
    A("s_branch L_mconst_done")
    A("L_mconst7:")
    A("v_lshrrev_b32 v37, 4, v0")
    A("v_lshl_or_b32 v36, v36, 2, v37")
    A("v_lshlrev_b32 v36, 1, v36")
    A(f"s_lshl_b32 s{sT[4]}, s{sT[6]}, 7")
    A(f"buffer_load_ushort v4, v36, {srd(sX)}, s{sT[4]} offen")
    A("s_branch L_mconst_done")
    A("L_flag2:")
    A("v_mov_b32 v15, 0")
    A(f"ds_read_b32 v15, v15 offset:{SL+8}")
    only_lanes(12, 0)
    A(f"s_lshl2_add_u32 s{sT[3]}, s{sC}, s{sLOC}")
    A(f"s_add_u32 s{sT[3]}, s{sT[3]}, {F2}")
    A("s_waitcnt lgkmcnt(0)")
    lstore([f"buffer_store_dword v15, v12, {srd(sWS)}, s{sT[3]} offen"])
    keep, nstep[0] = nstep[0], fstep
    wait(1)
    nstep[0] = keep
    A("s_branch L_flagged2")

    A("L_l0:")
    for u in range(att_at + 1 + dbl0, 8):
        wait_unless(th6 if u == 6 else th7)
        if rk == 14:
            ticket()
        kv_unit("V", u)
        if tk2 and u == 6:
            A("v_cmp_ne_u32 vcc, -1, v8")
            A("s_bcnt1_i32_b32 s1, vcc_lo")
            if prof:
                A("v_writelane_b32 v7, s1, 45")
    if rk == 14:
        A("s_waitcnt vmcnt(3)")
    if rk >= 13:
        role_write()
    if rk:
        A("L_rspin:")
        A(f"ds_read_b32 v36, v13 offset:{SL+12}")
        A("s_waitcnt lgkmcnt(0)")
        A(f"v_readfirstlane_b32 s{sRO}, v36")
        A(f"s_cmp_eq_u32 s{sRO}, -1")
        A("s_cbranch_scc1 L_rspin")
    o_consts()
    A(f"s_cmp_ge_u32 s{sRO}, 20")
    A("s_cbranch_scc1 L_mconst")
    A("L_mconst_done:")
    if endmode < 2:
        late_half(0, 40)
    if endmode == 0:
        late_half(1, 40)
    stamp(12)
    A("s_mov_b64 vcc, -1")
    A(f"s_cmp_ge_u32 s{sW}, 4")
    A("s_cbranch_scc1 L_pv_b")
    A("s_branch L_pv_a")
    if endmode:
        A("L_l0b:")
        A("L_l0a:")
        A(f"s_mov_b32 s3, s{sT[4]}")
        if fast_hook:
            assert endmode == 2 and mshift == 1 and thw == 999 and not woe
            A(f"s_and_b32 s{sT[5]}, s{sW}, 1")
            A(f"s_lshl_b32 s{sT[5]}, s{sT[5]}, 2")
            A(f"s_lshl_b32 s{sT[6]}, s{sW}, 10")
            A(f"s_add_u32 s{sT[6]}, s{sT[6]}, {WB}")
            A(f"s_cmp_ge_u32 s{sRO}, 20")
            A("s_cbranch_scc1 L_fh_m")
            row128_voff(36, 1280, 8, 9, f"s{sT[5]}")
            A(f"s_and_b32 s{sT[5]}, s{sRO}, 1")
            A(f"s_lshl1_add_u32 s{sT[5]}, s{sR}, s{sT[5]}")
            A(f"s_mul_i32 s{sT[5]}, s{sT[5]}, 48")
            A(f"s_add_u32 s{sT[5]}, s{sT[5]}, s{sW}")
            A(f"s_mul_i32 s{sT[5]}, s{sT[5]}, {8*1280}")
            A(f"s_lshr_b32 s{sT[4]}, s{sRO}, 1")
            A(f"s_lshl_b32 s{sT[4]}, s{sT[4]}, 7")
            A(f"s_add_u32 s{sT[4]}, s{sT[4]}, s{sT[5]}")
            keep = nstep[0]
            if woh:
                if wth:
                    A(f"s_cmp_ge_u32 s{sRO}, {wth}")
                    A("s_cbranch_scc1 L_fh_e")
                    A("s_waitcnt vmcnt(0)")
                    A("L_fh_e:")
                dma(36, sWO, sT[4], sT[6], woh, 64 * 1280, 8192, True)
            wait(woh)
            dma(36, sWO, sT[4], sT[6], 6 - woh, 64 * 1280, 8192)
            A("s_branch L_l0skip")
            A("L_fh_m:")
            row128_voff(36, 3072, 8, 9, f"s{sT[5]}")
            A(f"s_sub_u32 s{sT[4]}, s{sRO}, 20")
            A(f"s_lshl3_add_u32 s{sT[4]}, s{sT[4]}, s{sW}")
            A(f"s_mul_i32 s{sT[4]}, s{sT[4]}, {8*3072}")
            A(f"s_mul_i32 s{sT[5]}, s{sR}, 384")
            A(f"s_add_u32 s{sT[4]}, s{sT[4]}, s{sT[5]}")
            A(f"s_cmp_ge_u32 s{sRO}, 30")
            nstep[0] = keep
            if w1e:
                A("s_cbranch_scc1 L_fh_n")
                dma(36, sW1, sT[4], sT[6], 3, 128, 8192)
                wait(3)
                if w1e == 2:
                    late_half(2, 36, 8)
                A("s_branch L_l0skip")
                A("L_fh_n:")
                nstep[0] = keep
                wait(0)
            else:
                wait(0)
                A("s_cbranch_scc1 L_l0skip")
                dma(36, sW1, sT[4], sT[6], 3, 128, 8192)
        if thw < 999:
            A(f"s_cmp_ge_i32 s1, {thw}")
            A("s_cbranch_scc1 L_l0early")
        if not fast_hook:
            wait(3 if endmode == 1 else 0)
        A("L_l0early:")
        if woe == 1:
            A(f"s_cmp_lt_u32 s{sC}, 8")
            A("s_cbranch_scc1 L_l0skip")
        if endmode == 2 and not fast_hook:
            late_half(0, 36, 8)
        if woe == 2:
            A(f"s_cmp_lt_u32 s{sC}, 8")
            A("s_cbranch_scc1 L_l0skip")
        if not fast_hook:
            late_half(1, 36, 8)
        A("L_l0skip:")
        if thw < 999:
            A("s_waitcnt vmcnt(6)")
        A(f"s_mov_b32 s{sT[4]}, s3")
        A(f"s_cmp_lt_u32 s{sW}, 4")
        A("s_cbranch_scc1 L_pv3a")
        A(f"s_cmp_lg_u32 s{sW}, 7")
        A("s_branch L_pv3b")

    for blk in ool:
        for ln in blk:
            A(ln)

    A("L_exit:")
    writeback(2)
    if prof:
        flush(48 if prof == 4 else 16, True)
        A(f"s_lshl3_add_u32 s{sT[0]}, s2, s{sW}")
        A(f"s_lshl_b32 s{sT[0]}, s{sT[0]}, 8")
        A(f"s_add_u32 s{sT[0]}, s{sT[0]}, {PROF}")
        A(f"v_writelane_b32 v7, s{sCNT}, 40")
        A(f"v_writelane_b32 v7, s{sSLOW}, 41")
        A(f"v_writelane_b32 v7, s{sFB}, 42")
        A(f"v_writelane_b32 v7, s{sRO}, 46")
        A(f"v_lshl_add_u32 v8, v0, 2, s{sT[0]}")
        A(f"global_store_dword v8, v7, s[{sWS}:{sWS+1}]")
    A("L_end:")
    A("s_endpgm")
    A("L_codeend:")
    body = A.finish()

    ref = open(os.path.join(os.path.dirname(os.path.abspath(__file__)), "header.txt")).read()
    head = ref + f"""; @launch grid=(256,1,1) block=(512,1,1) lds={LDS_SIZE}
.amdgcn_target "amdgcn-amd-amdhsa--gfx950"
.text
.globl {KNAME}
.p2align 8
.type {KNAME},@function
{KNAME}:
"""
    tail = f""".section .rodata,"a"
.p2align 6
.amdhsa_kernel {KNAME}
  .amdhsa_next_free_vgpr 256
  .amdhsa_next_free_sgpr 102
  .amdhsa_accum_offset 256
  .amdhsa_group_segment_fixed_size 0
  .amdhsa_kernarg_size 104
  .amdhsa_user_sgpr_count 2
  .amdhsa_user_sgpr_kernarg_segment_ptr 1
  .amdhsa_system_sgpr_workgroup_id_x 1
.end_amdhsa_kernel
"""
    return head + body + tail


if __name__ == "__main__":
    out = None
    kw = {}
    for a in sys.argv[1:]:
        if "=" in a:
            k, v = a.split("=")
            kw[k] = int(v)
        else:
            out = a
    if out is None:
        out = os.path.join(os.path.dirname(os.path.dirname(os.path.abspath(__file__))), NAME + ".s")
    open(out, "w").write(gen(**kw))
    print("wrote", out)
```

```python
import sys, os, math, struct
sys.path.insert(0, os.path.dirname(os.path.abspath(__file__)))
from asmlib import Asm, weave, STRICT

NAME = "interleave_layers__sliding_block_cached__dense_activation_gelu__decode"
KNAME = NAME + "_kernel"


def f2u(x):
    return struct.unpack("<I", struct.pack("<f", x))[0]


LR = 0x20000
OP = lambda L: 21504 * L
LSE = lambda L: 12288 + 21504 * L
XL = lambda k: 12544 + 256 * k
HC = 13568
EEND = 21504
HS = lambda L: 34048 + 256 * L
QS1 = 34560
HP = lambda L: 34816 + 7680 * L
QP1 = 50176
LEND = 62464
F2 = 0x11000
QP0 = 0x12000
QS0 = QP0 + 24576
C0 = 0x100000
XA = lambda L: C0 + 81920 * L
XM = C0 + 163840
WS_SIZE = C0 + 245760
PROF = 0x300000
OOB = 0x40000000

QB, HB, XS, SL = 0, 384, 768, 896
DUM, MLB, RB, C1, XB, CS, OB, PB = 1024, 2048, 3072, 4608, 6144, 6912, 7680, 14336
OR = 416
WQ = 22528
WB = WQ + 40960
W1L, W2L = WB, WB + 24576
LDS_SIZE = WB + 49152

sK, sV, sWQ, sWO, sW1, sW2, sWS, sX, sB1, sB2, sOUT, sDBG = [8 + 4 * i for i in range(12)]
sR, sC, sW, sKV, sLOC, sL, sSLOW, sCNT, sFB = 56, 57, 58, 59, 60, 61, 62, 63, 64
sT = [65, 66, 67, 68, 69, 70, 71]
sODD = 72
sM = 74
sPUB = 3
TMASK = (16, 18, 6)
sNEAR = 0
sRO = 4
sPC = 4
STAMP0 = 76

KB, VB = 64, 160
srd = lambda b: f"s[{b}:{b+3}]"
vr = lambda b, n: f"v[{b}:{b+n-1}]" if n > 1 else f"v{b}"
FULL = "row_mask:0xf bank_mask:0xf"
XOR1 = "quad_perm:[1,0,3,2] " + FULL
XOR2 = "quad_perm:[2,3,0,1] " + FULL
HMIR = "row_half_mirror " + FULL
MIR = "row_mirror " + FULL


PADS = {'att': 6, 'attb': 0, 'sob': 4, 'fin': 6, 'm': 6, 'ng': 4, 'x6': 3, 'x1': 3, 'p1': 6, 'qt': 4, 'p11': 2, 'p10': 5, 'p9': 2, 'p3': 1, 'q': 6}


def gen(prof=0, force_slow=0, d_pol=0, near=1, to=1, tm=3, tq=0, tf=0, td=1, woe=0, ka2=1, vf=1, tma=0, tmb=0, sl0=2, wf=0, wb=0, x_dirty=0, eb=15, ebf=0, lc=0, strict=1, x_nw=0, pads=PADS, dly=None, gk=0, gm=11, gs=3, go=4, f1w=0, sob=4, qa=0, sobn=2, tl=0, xl=1, fl=0, tod=0, d_late=0, woh=0, wth=0, rk=12, rw=6, w1e=0, bearly=1, hqd=1, tk=8, tk2=0, pw=4, th5=16, dbl0=1, q0_at=1, nrace=1, thw=999, th6=999, th7=999, d_dbg=0, d_wb=0, touch=0, outpol=0, d_fix=0, d_a=0, d_b=0, d_sh=3, late_rst=1, warm_at=4, f1_at=6, f2_at=2, att_at=5, endmode=2, mshift=1, fast_hook=1, smode=2, qsync=1, fstore=0, cw1=2, cw2=0, x_noflag=0, x_nog=0, prio=1, qmode=1, at=0, na=3, nb=1, bar_at=7, late_m=1, ref=0, sf=6, aprio=0, x_nost=0, x_nowarm=0, x_nowo=0):
    STRICT[0] = bool(strict)
    A = Asm()
    ool = []
    uid = [0]

    def new(prefix):
        uid[0] += 1
        return f"L_{prefix}{uid[0]}"

    def stamp(i, always=False):
        if prof == 1 or (prof in (2, 4) and always):
            A(f"s_memrealtime s[{STAMP0+2*i}:{STAMP0+2*i+1}]")

    nstep = [0]
    npoll = [0]

    def wait(n):
        if prof == 4 and nstep[0]:
            A("s_waitcnt lgkmcnt(0)")
            A(f"v_writelane_b32 v7, s{STAMP0+2}, {nstep[0]}")
        A(f"s_waitcnt vmcnt({n})")
        if prof == 4:
            A(f"s_memrealtime s[{STAMP0+2}:{STAMP0+3}]")
            nstep[0] += 1
        if d_dbg == 3:
            nstep[0] += 1
            if nstep[0] in (d_a, d_b):
                A("s_waitcnt lgkmcnt(0)")
                A("s_memrealtime s[100:101]" if nstep[0] == d_a else "s_memrealtime s[94:95]")
                A("s_waitcnt lgkmcnt(0)")

    def place(name):
        if pads and name in pads:
            A(".p2align 5")
            if pads[name]:
                A(f".fill {pads[name]}, 4, 0xbf800000   ; placement of a branch target, never executed")

    def writeback(site):
        if wb & site:
            l = new("nowb")
            A(f"s_lshl3_add_u32 s{sM}, s{sRO}, s{sW}")
            A(f"s_cmp_lg_u32 s{sM}, 255")
            A(f"s_cbranch_scc1 {l}")
            A("buffer_wbl2 sc1")
            A(f"{l}:")

    def lwait(bit):
        if not eb & bit:
            A("s_nop 0" if x_nw & bit else "s_waitcnt lgkmcnt(0)")

    def ewrite(bit, wr, after):
        if ebf & bit:
            A("s_barrier")
            for i in range(6):
                A("s_nop 15")
            A(wr)
            A(f"s_branch {after}")
        else:
            A(wr)

    def poison(bit, wr, reg):
        if eb & bit:
            A(f"v_mov_b32 v{reg}, -1")
            A(wr)

    def poison_rb():
        if eb & 1:
            A(f"s_and_b32 s{sT[1]}, s{sW}, 3")
            A(f"s_min_u32 s{sT[1]}, s{sT[1]}, 2")
            A(f"s_lshl_b32 s{sT[1]}, s{sT[1]}, 9")
            A(f"v_lshl_add_u32 v20, v0, 3, s{sT[1]}")
            A("v_mov_b64 v[22:23], -1")
            A(f"ds_write_b64 v20, v[22:23] offset:{RB}")

    def redo(bit, top, a, b, reinit):
        if eb & bit:
            l = new("redo")
            A(f"v_cmp_u_f32 vcc, v{a}, v{b}")
            A(f"s_cbranch_vccnz {l}")
            A(f"{l}d:")
            ool.append([f"{l}:", "s_sub_u32 s5, s5, 1", f"s_cbranch_scc1 {l}t"] + reinit + [f"s_cmp_lg_u32 s{sSLOW}, 0", f"s_branch {top}",
                        f"{l}t:", "s_mov_b32 s5, 0", f"s_branch {l}d"])

    def dm(code):
        if d_dbg == 3 and code in (d_a, d_b):
            A("s_memrealtime s[100:101]" if code == d_a else "s_memrealtime s[94:95]")

    def ticket():
        A(f"s_cmp_lg_u32 s{sW}, {rw}")
        A("s_cbranch_scc1 L_notk")
        A(f"s_add_u32 s{sT[4]}, s{sC}, -9")
        A(f"v_mov_b32 v4, s{sT[4]}")
        A(f"s_cmp_lt_u32 s{sC}, 8")
        A("s_cbranch_scc1 L_notk")
        A("v_mov_b32 v4, 1")
        A(f"v_mov_b32 v5, {F2+256}")
        A("s_mov_b64 exec, 1")
        A(f"buffer_atomic_add v4, v5, {srd(sWS)}, s{sLOC} offen sc0 sc1")
        A("s_mov_b64 exec, -1")
        A("L_notk:")

    def role_write():
        A(f"s_cmp_lg_u32 s{sW}, {rw}")
        A("s_cbranch_scc1 L_notk2")
        A("v_add_u32 v4, 9, v4")
        A("v_and_b32 v4, 31, v4")
        A("s_mov_b64 exec, 1")
        A(f"ds_write_b32 v13, v4 offset:{SL+12}")
        A("s_mov_b64 exec, -1")
        A("L_notk2:")

    def wait_unless(th):
        if not tk or th > 256:
            wait(0)
            return
        l = new("skip")
        if prof == 4:
            A("s_waitcnt lgkmcnt(0)")
            A(f"v_writelane_b32 v7, s{STAMP0+2}, {nstep[0]}")
        A(f"s_cmp_ge_i32 s1, {th}")
        A(f"s_cbranch_scc1 {l}")
        A("s_waitcnt vmcnt(0)")
        A(f"{l}:")
        A("s_waitcnt vmcnt(3)")
        if prof == 4:
            A(f"s_memrealtime s[{STAMP0+2}:{STAMP0+3}]")
            nstep[0] += 1

    hit = [prof == 4 or (prof == 3 and ref > 13)]

    def pt(k):
        if prof == 3 and k in (ref, at):
            A(f"s_memtime s[{STAMP0+(2 if k == at else 0)}:{STAMP0+(3 if k == at else 1)}]")
            if k:
                hit[0] = True

    def lgk(n):
        A(f"s_waitcnt lgkmcnt({0 if (prof == 1 or hit[0]) else n})")

    def flush(base, always=False):
        if prof == 1 or (prof >= 2 and always):
            A("s_waitcnt lgkmcnt(0)")
            for i in range(13):
                A(f"v_writelane_b32 v7, s{STAMP0+2*i}, {base+i}")
                A(f"s_mov_b32 s{STAMP0+2*i}, 0")

    def lstore(stores, cmp=True):
        a, b = new("slow"), new("back")
        if cmp:
            A(f"s_cmp_lg_u32 s{sSLOW}, 0")
        A(f"s_cbranch_scc1 {a}")
        for s in stores:
            A(s)
        A(f"{b}:")
        ool.append([f"{a}:", "s_nop 7"] + [s + " sc1" if s.startswith("buffer_") else s for s in stores] + ["s_nop 1", f"s_branch {b}"])

    def poll(loads, check, shadow=None, own_wait=False, first=False):
        top, cont, tmo = new("poll"), new("cont"), new("tmo")
        mid = new("mid")
        if dly:
            for i in range(dly.get(npoll[0] + 1, 0)):
                A("s_nop 3")
                A("s_nop 3")
        if shadow is not None and first:
            shadow()
        elif shadow is not None:
            for s in loads:
                A(s)
            shadow()
            A(f"s_branch {mid}")
        npoll[0] += 1
        key = f"p{npoll[0]}"
        if pads and pads.get(key) is not None:
            if shadow is None or first:
                A(f"s_branch {top}")
            A(".p2align 5")
            n = pads.get(key, pads.get("p"))
            if n:
                A(f".fill {n}, 4, 0xbf800000   ; placement of a branch target, never executed")
        A(f"{top}:")
        for s in loads:
            A(s)
        A(f"s_sub_u32 s{sCNT}, s{sCNT}, 1")
        A(f"s_cbranch_scc1 {tmo}")
        A(f"{mid}:")
        if not own_wait:
            A("s_waitcnt vmcnt(0)")
        check()
        A(f"s_cbranch_vccnz {top}")
        A(f"{cont}:")
        ool.append([f"{tmo}:", f"s_mov_b32 s{sCNT}, 0", "s_waitcnt vmcnt(0)", f"s_branch {cont}"])
        return mid

    def kv_unit(which, u):
        base, s, vo = (KB, sK, 8) if which == "K" else (VB, sV, 9)
        so = f"s{sKV}"
        if u:
            A(f"s_add_u32 s{sT[0]}, s{sKV}, {u*64*3072}")
            so = f"s{sT[0]}"
        for t in range(3):
            A(f"buffer_load_dwordx4 {vr(base+24*(u>>1)+8*t+4*(u&1),4)}, v{vo}, {srd(s)}, {so} offen offset:{t*128} {'' if d_pol else 'nt'}")

    def dma(voff, s, soff_reg, m0_reg, n, sstep, mstep, more=False):
        for i in range(n):
            A(f"s_mov_b32 m0, s{m0_reg}")
            A(f"buffer_load_dwordx4 v{voff}, {srd(s)}, s{soff_reg} offen nt lds")
            if i < n - 1 or more:
                A(f"s_add_u32 s{m0_reg}, s{m0_reg}, {mstep}")
                A(f"s_add_u32 s{soff_reg}, s{soff_reg}, {sstep}")

    def allred8(op, dst, src):
        A(f"{op}_dpp v{dst}, v{src}, v{src} {XOR1}")
        A(f"{op}_dpp v{dst}, v{dst}, v{dst} {XOR2}")
        A(f"{op}_dpp v{dst}, v{dst}, v{dst} {HMIR}")

    def emit(lst):
        for x in lst:
            A(x)

    def row_sum(r, n=4):
        return [f"v_add_f32_dpp v{r}, v{r}, v{r} {m}" for m in (XOR1, XOR2, HMIR, MIR)[:n]]

    def ln_mean(s1, n=4):
        return row_sum(s1, n) + [f"v_mul_f32 v{s1}, {hex(f2u(1/640))}, v{s1}"]

    def ln_sq(q2, n=4):
        return row_sum(q2, n) + [f"v_mul_f32 v{q2}, {hex(f2u(1/640))}, v{q2}", f"v_add_f32 v{q2}, {hex(f2u(1e-5))}, v{q2}"]

    def ln_rstd(q2, s1):
        return [f"v_fma_f32 v{q2}, -v{s1}, v{s1}, v{q2}", f"v_max_f32 v{q2}, {hex(f2u(1e-5))}, v{q2}", f"v_rsq_f32 v{q2}, v{q2}"]

    def red_pair(a, b):
        return [f"v_permlane32_swap_b32 v{a}, v{b}", f"v_add_f32 v{a}, v{a}, v{b}", f"v_mov_b32 v{b}, v{a}",
                f"v_permlane16_swap_b32 v{a}, v{b}", f"v_add_f32 v{a}, v{a}, v{b}"]

    def red_quad(a):
        return [f"v_permlane32_swap_b32 v{a}, v{a+2}", f"v_permlane32_swap_b32 v{a+1}, v{a+3}", f"v_pk_add_f32 {vr(a,2)}, {vr(a,2)}, {vr(a+2,2)}",
                f"v_permlane16_swap_b32 v{a}, v{a+1}", f"v_add_f32 v{a}, v{a}, v{a+1}"]

    QSCALE = 192 ** -0.5 * math.log2(math.e)

    def x_operand(p, a):
        A(f"v_cndmask_b32 v{a}, v{p}, v59, s[{sODD}:{sODD+1}]")
        A(f"v_mov_b32_dpp v{a+1}, v{a} row_shl:4 {FULL}")
        A(f"v_mov_b32_dpp v{a+2}, v{a} row_shl:8 {FULL}")
        A(f"v_mov_b32_dpp v{a+3}, v{a} row_shl:12 {FULL}")

    def att_consts():
        A(f"s_lshl_b32 s{sT[1]}, s{sW}, 2")
        A("v_lshl_add_u32 v10, v0, 2, 64")
        A(f"v_writelane_b32 v10, s{sT[1]}, 63")
        A("v_and_b32 v11, 7, v0")
        A("v_lshlrev_b32 v11, 2, v11")
        A("v_lshrrev_b32 v12, 4, v0")
        A("v_mov_b32 v13, 0")
        A("v_and_b32 v14, 3, v0")
        A("v_mul_u32_u24 v14, 0x5555, v14")
        for i, m in enumerate(TMASK):
            A(f"s_mov_b32 s{m}, {hex(0x10001 << i)}")
            A(f"s_mov_b32 s{m+1}, {hex(0x10001 << i)}")
        A(f"s_lshl_b32 s{sT[1]}, s{sW}, 10")
        A(f"s_addk_i32 s{sT[1]}, {PB}")
        A(f"v_lshl_add_u32 v15, v12, 8, s{sT[1]}")
        A("v_and_b32 v16, 12, v0")
        A("v_lshl_add_u32 v15, v16, 4, v15")
        A("v_and_b32 v16, 1, v0")
        A("v_lshl_add_u32 v15, v16, 5, v15")
        A("v_and_b32 v16, 2, v0")
        A("v_lshl_add_u32 v15, v16, 2, v15")
        A("v_and_b32 v16, 0x3c, v0")
        A(f"v_lshl_add_u32 v16, v16, 2, s{sT[1]}")
        A("v_lshlrev_b32 v12, 3, v12")
        A(f"s_mul_i32 s{sT[2]}, s{sW}, {2*OR}")
        A(f"s_addk_i32 s{sT[2]}, {OB-DUM}")
        A("v_lshrrev_b32 v18, 5, v0")
        A(f"v_mul_u32_u24 v17, {OR}, v18")
        A(f"v_add_u32 v17, s{sT[2]}, v17")
        A("v_bfe_u32 v19, v0, 3, 1")
        A("v_xor_b32 v18, v18, v19")
        A("v_xor_b32 v18, 1, v18")
        A("v_mul_u32_u24 v17, v17, v18")
        A("v_and_b32 v18, 6, v0")
        A("v_lshl_add_u32 v17, v18, 4, v17")
        A("v_and_b32 v18, 1, v0")
        A("v_lshl_add_u32 v17, v18, 3, v17")
        A("v_bfe_u32 v18, v0, 4, 1")
        A("v_lshl_add_u32 v17, v18, 2, v17")
        A(f"v_add_u32 v17, {DUM}, v17")
        A(f"s_mul_i32 s{sT[2]}, s{sW}, 96")
        A("v_lshrrev_b32 v18, 2, v0")
        A(f"v_mul_u32_u24 v18, {OR}, v18")
        A("v_and_b32 v19, 3, v0")
        A("v_lshl_add_u32 v18, v19, 3, v18")
        A(f"v_add_u32 v18, s{sT[2]}, v18")
        A("v_and_b32 v57, 15, v0")
        A(f"s_lshl_b32 s{sT[2]}, s{sT[2]}, 3")
        A(f"s_lshr_b32 s{sT[1]}, s{sC}, 3")
        A(f"s_mul_i32 s{sT[1]}, s{sT[1]}, {3072-256}")
        A(f"s_add_u32 s{sT[2]}, s{sT[2]}, s{sT[1]}")
        A(f"s_lshl_b32 s{sT[1]}, s{sC}, 5")
        A(f"s_add_u32 s{sT[2]}, s{sT[2]}, s{sT[1]}")
        A(f"v_lshl_add_u32 v19, v57, 8, s{sT[2]}")
        A("v_add_u32 v57, 13, v57")
        A("v_lshrrev_b32 v57, 4, v57")
        A("v_lshl_or_b32 v19, v57, 30, v19")
        A("v_lshrrev_b32 v57, 4, v0")
        A("v_lshl_add_u32 v19, v57, 3, v19")

    def relayout(T):
        if True:
            for t in range(3):
                X = KB + 24 * T + 8 * t
                for i in range(4):
                    A(f"v_mov_b32 v{48+i}, v{X+i}")
                for i in range(4):
                    A(f"v_mov_b32_dpp v{X+i}, v{X+4+i} row_ror:8 row_mask:0xf bank_mask:0xc")
                for i in range(4):
                    A(f"v_mov_b32_dpp v{X+4+i}, v{48+i} row_ror:8 row_mask:0xf bank_mask:0x3")

    def zero(lo, hi):
        for r in range(lo, hi, 2):
            A(f"v_mov_b64 v[{r}:{r+1}], 0")

    def o_consts():
        A(f"s_and_b32 s{sT[2]}, s{sRO}, 1")
        A(f"s_cmp_ge_u32 s{sW}, 5")
        A(f"s_addc_u32 s9, s{sT[2]}, s{sT[2]}")
        A("v_lshrrev_b32 v5, 4, v0")
        A("v_lshl_add_u32 v5, v5, 1, v0")
        A("v_and_b32 v5, 7, v5")
        A(f"s_mul_i32 s8, s{sT[2]}, 6")
        A(f"s_add_u32 s8, s8, s{sW}")
        A("s_lshl_b32 s8, s8, 10")
        A("s_addk_i32 s8, -2048")
        A("v_lshl_add_u32 v4, v0, 4, s8")
        A("s_lshl_b32 s9, s9, 6")
        A("v_lshl_add_u32 v5, v5, 3, s9")
        A("v_bfe_u32 v8, v0, 3, 1")
        A("v_lshl_add_u32 v5, v8, 2, v5")
        A(f"s_lshl_b32 s8, s{sW}, 13")
        A(f"s_add_u32 s8, s8, {WB-16384}")
        A(f"s_lshl_b32 s9, s{sW}, 8")

    def att_zero():
        zero(32, 48)
        zero(52, 64)

    def q_operand(tile):
        A(f"s_and_b32 s{sM}, s{tile}, 3")
        A(f"s_lshl_b32 s{sM}, s{sM}, 5")
        A(f"s_lshr_b32 s{sM+1}, s{tile}, 2")
        A(f"s_mul_i32 s{sM+1}, s{sM+1}, 20480")
        A(f"v_xor_b32 v60, s{sM}, v3")
        A(f"v_add_u32 v60, s{sM+1}, v60")
        for h4 in range(2):
            A(f"ds_read_b64_tr_b16 {vr(20+2*h4,2)}, v60 offset:{WQ+16384+h4*512}")
        for kb in range(2):
            for q in range(4):
                A(f"ds_read_b64_tr_b16 {vr(24+8*kb+2*q,2)}, v60 offset:{WQ+kb*8192+(q>>1)*4096+(q&1)*512}")

    def q_matvec(a, waits=False):
        for kb, b in enumerate((24, 32, 20)):
            if waits:
                lgk(2 - kb)
            A(f"v_smfmac_f32_16x16x64_bf16 v[40:43], {vr(a+4*kb,4)}, {vr(b,8)}, v1")

    def xb_addr(dst, tmp):
        A(f"v_and_b32 v{dst}, 32, v0")
        A(f"v_bfe_u32 v{tmp}, v0, 2, 1")
        A(f"v_lshl_or_b32 v{dst}, v{tmp}, 4, v{dst}")
        A(f"v_bfe_u32 v{tmp}, v0, 3, 2")
        A(f"v_lshl_or_b32 v{dst}, v{tmp}, 2, v{dst}")

    def x64_addr(dst, tmp):
        A(f"v_and_b32 v{dst}, 12, v0")
        A(f"v_lshlrev_b32 v{dst}, 3, v{dst}")
        A(f"v_and_b32 v{tmp}, 3, v0")
        A(f"v_lshl_or_b32 v{dst}, v{tmp}, 2, v{dst}")
        A(f"v_lshrrev_b32 v{tmp}, 5, v0")
        A(f"v_lshl_or_b32 v{dst}, v{tmp}, 4, v{dst}")
        A(f"v_bfe_u32 v{tmp}, v0, 4, 1")
        A(f"v_lshl_or_b32 v{dst}, v{tmp}, 1, v{dst}")

    def gather64(n, soff, shadow=None, post=None):
        def chk():
            for i in range(1, n):
                A(f"s_waitcnt vmcnt({n-1-i})")
                for h in range(2):
                    A(f"v_pk_add_f32 {vr(44+2*h,2)}, {vr(44+2*h,2)}, {vr(44+4*i+2*h,2)}")
            if post is not None:
                post()
                A("v_cmp_u_f32 vcc, v44, v44")
                return
            A("v_maximum3_f32 v48, v44, v45, v46")
            A("v_cmp_u_f32 vcc, v48, v47")
        poll([f"buffer_load_dwordx4 {vr(44+4*i,4)}, v8, {srd(sWS)}, s{soff} offen offset:{1024*i} sc1" for i in range(n)], chk, shadow, True)

    def x_sums_prep(qs):
        A("v_and_b32 v60, 1, v0")
        A("v_mul_u32_u24 v60, 384, v60")
        A("v_and_or_b32 v60, v0, 48, v60")
        only_lanes(61, 0)
        A(f"s_lshl3_add_u32 s{sT[4]}, s{sC}, s{sLOC}")
        A(f"s_add_u32 s{sT[4]}, s{sT[4]}, {qs}")
        A(f"s_cmp_lg_u32 s{sSLOW}, 0")

    def x_sums():
        for i in range(5):
            A(f"ds_read_b128 {vr(20+4*i,4)}, v60 offset:{XB+64*i}")
        for i in range(5):
            lgk(4 - i)
            A(f"v_mfma_f32_16x16x32_bf16 v[40:43], {vr(20+4*i,4)}, {vr(20+4*i,4)}, {'v[40:43]' if i else 0}")
        lstore([f"buffer_store_dwordx2 v[40:41], v61, {srd(sWS)}, s{sT[4]} offen"], cmp=False)

    def only_lanes(dst, shift):
        if shift:
            A(f"v_lshrrev_b32 v{dst}, {shift}, v0")
            A(f"v_min_u32 v{dst}, 1, v{dst}")
        else:
            A(f"v_min_u32 v{dst}, 1, v0")
        A(f"v_lshlrev_b32 v{dst}, 30, v{dst}")

    def row128_voff(dst, stride, t1, t2, par):
        A(f"v_lshrrev_b32 v{t1}, 3, v0")
        A(f"v_mul_u32_u24 v{dst}, {stride}, v{t1}")
        A(f"v_and_or_b32 v{t1}, v{t1}, 2, {par}")
        A(f"v_and_b32 v{t2}, 7, v0")
        A(f"v_xor_b32 v{t1}, v{t1}, v{t2}")
        A(f"v_lshl_add_u32 v{dst}, v{t1}, 4, v{dst}")

    def late_half(h, t0, t1=None):
        m, done = new("lwm"), new("lwd")
        hm = h - min(mshift, 1)
        t1 = t0 + 1 if t1 is None else t1
        A(f"s_and_b32 s{sT[5]}, s{sW}, 1")
        A(f"s_lshl_b32 s{sT[5]}, s{sT[5]}, 2")
        A(f"s_lshl_b32 s{sT[6]}, s{sW}, 10")
        A(f"s_add_u32 s{sT[6]}, s{sT[6]}, {WB + h*24576}")
        A(f"s_sub_u32 s{sT[4]}, s{sRO}, 20")
        if h == 2:
            A(f"s_branch {m}")
        elif hm >= 0:
            A(f"s_cmp_lt_u32 s{sT[4]}, 10")
            A(f"s_cbranch_scc1 {m}")
        row128_voff(t0, 1280, t1, t1 + 1, f"s{sT[5]}")
        A(f"s_and_b32 s{sT[5]}, s{sRO}, 1")
        A(f"s_lshl1_add_u32 s{sT[5]}, s{sR}, s{sT[5]}")
        A(f"s_mul_i32 s{sT[5]}, s{sT[5]}, 48")
        A(f"s_add_u32 s{sT[5]}, s{sT[5]}, s{sW}")
        if h:
            A(f"s_add_u32 s{sT[5]}, s{sT[5]}, 24")
        A(f"s_mul_i32 s{sT[5]}, s{sT[5]}, {8*1280}")
        A(f"s_lshr_b32 s{sT[4]}, s{sRO}, 1")
        A(f"s_lshl_b32 s{sT[4]}, s{sT[4]}, 7")
        A(f"s_add_u32 s{sT[4]}, s{sT[4]}, s{sT[5]}")
        dma(t0, sWO, sT[4], sT[6], 3, 64 * 1280, 8192)
        A(f"s_branch {done}")
        A(f"{m}:")
        if mshift:
            A(f"s_addk_i32 s{sT[6]}, -24576")
        if hm <= 0:
            row128_voff(t0, 3072, t1, t1 + 1, f"s{sT[5]}")
            A(f"s_lshl3_add_u32 s{sT[4]}, s{sT[4]}, s{sW}")
            A(f"s_mul_i32 s{sT[4]}, s{sT[4]}, {8*3072}")
            A(f"s_mul_i32 s{sT[5]}, s{sR}, 384")
            A(f"s_add_u32 s{sT[4]}, s{sT[4]}, s{sT[5]}")
            dma(t0, sW1, sT[4], sT[6], 3, 128, 8192)
        else:
            row128_voff(t0, 1280, t1, t1 + 1, f"s{sT[5]}")
            A(f"s_mul_i32 s{sT[5]}, s{sR}, 24")
            A(f"s_add_u32 s{sT[5]}, s{sT[5]}, s{sW}")
            A(f"s_mul_i32 s{sT[5]}, s{sT[5]}, {8*1280}")
            A(f"s_lshl_b32 s{sT[4]}, s{sT[4]}, 7")
            A(f"s_add_u32 s{sT[4]}, s{sT[4]}, s{sT[5]}")
            dma(t0, sW2, sT[4], sT[6], 3, 64 * 1280, 8192)
        A(f"{done}:")

    def phase2():
        if f1w:
            A("v_mov_b32 v16, 0")
            A(f"s_cmp_lg_u32 s{sW}, 0")
            A("s_cbranch_scc1 L_f1spin")
        A("L_flagchk:")
        A("v_and_b32 v15, 0x80808080, v13")
        A("v_cmp_ne_u32 vcc, 0x80808080, v15")
        if not x_noflag:
            A("s_cbranch_vccnz L_flagretry")
        A("L_flagok:")
        ool.append(["L_flagretry:", f"s_sub_u32 s{sCNT}, s{sCNT}, 1", "s_cbranch_scc1 L_flagtmo",
                    f"buffer_load_dword v13, v14, {srd(sDBG)}, 0 offen sc1", "s_waitcnt vmcnt(0)", "s_branch L_flagchk",
                    "L_flagtmo:", f"s_mov_b32 s{sCNT}, 0", "s_branch L_flagok"])
        stamp(3)
        A(f"s_mul_i32 s{sT[1]}, s{sFB}, 0x01010101")
        A(f"v_cmp_ne_u32 vcc, s{sT[1]}, v13")
        A(f"s_lshl_b32 s{sT[1]}, s{sR}, 3")
        A(f"s_lshr_b64 s[{sM}:{sM+1}], vcc, s{sT[1]}")
        A(f"s_and_b32 s{sM}, s{sM}, 0xff")
        A(f"s_cselect_b32 s{sSLOW}, {0 if x_noflag else 1}, {force_slow}")
        if f1w:
            A(f"v_mov_b32 v15, s{sSLOW}")
            A(f"ds_write_b32 v16, v15 offset:{SL+16}")
            A("L_f1spin:")
            A(f"ds_read_b32 v15, v16 offset:{SL+16}")
            A("s_waitcnt lgkmcnt(0)")
            A(f"v_readfirstlane_b32 s{sSLOW}, v15")
            A(f"s_cmp_eq_u32 s{sSLOW}, -1")
            A("s_cbranch_scc1 L_f1spin")
        only_lanes(58, 4)
        A("v_lshl_or_b32 v58, v0, 4, v58")
        A(f"s_and_b32 s{sT[3]}, s{sC}, 3")
        A(f"s_mul_i32 s{sT[5]}, s{sT[3]}, 6144")
        A(f"s_and_b32 s{sT[1]}, s{sC}, 0x1c")
        A(f"s_lshr_b32 s{sT[2]}, s{sW}, 1")
        A(f"s_add_u32 s{sT[1]}, s{sT[1]}, s{sT[2]}")
        A(f"s_lshl_b32 s{sT[1]}, s{sT[1]}, 8")
        A(f"s_add_u32 s{sT[5]}, s{sT[5]}, s{sT[1]}")
        A(f"s_and_b32 s{sT[1]}, s{sW}, 1")
        A(f"s_lshl3_add_u32 s{sT[5]}, s{sT[1]}, s{sT[5]}")
        A(f"s_add_u32 s{sT[5]}, s{sT[5]}, s{sLOC}")
        A(f"s_add_u32 s{sT[5]}, s{sT[5]}, {QP0 - 8*256}")
        A(f"s_cmp_lt_u32 s{sC}, {99 if x_nost & 2 else 8}")
        A("s_cbranch_scc1 L_p2a")
        lstore([f"buffer_store_dwordx2 v[40:41], v58, {srd(sWS)}, s{sT[5]} offen"])
        A("L_p2a:")
        A(f"s_lshl_b32 s{sT[1]}, s{sW}, 5")
        A(f"s_add_u32 s{sT[1]}, s{sT[1]}, s{sC}")
        A(f"s_cmp_ge_u32 s{sT[1]}, {0 if x_nost & 1 else LEND//1024}")
        A("s_cbranch_scc1 L_p2b")
        A(f"s_lshl_b32 s{sT[2]}, s{sT[1]}, 10")
        A(f"s_add_u32 s{sT[2]}, s{sT[2]}, s{sLOC}")
        for r in range(16, 20):
            A(f"v_mov_b32 v{r}, -1")
        A("v_lshlrev_b32 v15, 4, v0")
        lstore([f"buffer_store_dwordx4 v[16:19], v15, {srd(sWS)}, s{sT[2]} offen"])
        A("L_p2b:")
        A(f"s_sub_u32 s{sT[1]}, s{sT[1]}, 224")
        A(f"s_cmp_ge_u32 s{sT[1]}, 4")
        A("s_cbranch_scc1 L_p2c")
        x_sums_prep(QS0)
        x_sums()
        A("L_p2c:")

    def q0_gather():
        A("L_f2chk:")
        A("v_cmp_eq_u32 vcc, -1, v28")
        A("s_cbranch_vccnz L_f2retry")
        A("L_f2ok:")
        ool.append(["L_f2retry:", f"s_sub_u32 s{sCNT}, s{sCNT}, 1", "s_cbranch_scc1 L_f2tmo",
                    f"buffer_load_dword v28, v29, {srd(sWS)}, s{sT[3]} offen sc1", "s_waitcnt vmcnt(0)", "s_branch L_f2chk",
                    "L_f2tmo:", f"s_mov_b32 s{sCNT}, 0", "s_branch L_f2ok"])
        if prof == 1:
            A(f"v_writelane_b32 v7, s{sCNT}, 43")
        A("v_cmp_eq_u32 vcc, 1, v28")
        A(f"s_bcnt1_i32_b32 s{sNEAR}, vcc_lo")
        A(f"s_cmp_ge_u32 s{sNEAR}, 16")
        A(f"s_cselect_b32 s{sNEAR}, 8192, 0")
        if near >= 4:
            A(f"s_getreg_b32 s{sNEAR}, hwreg(HW_REG_XCC_ID, 2, 1)")
            A(f"s_xor_b32 s{sNEAR}, s{sNEAR}, {near & 1}")
            A(f"s_lshl_b32 s{sNEAR}, s{sNEAR}, 13")
        if prof:
            A(f"s_lshr_b32 s{sT[1]}, s{sNEAR}, 12")
            A(f"v_writelane_b32 v7, s{sT[1]}, 44")
        A(f"s_cmp_ge_u32 s{sW}, 6")
        A("s_cbranch_scc1 L_q0iss")
        A("v_lshrrev_b32 v28, 4, v0")
        A("v_mul_u32_u24 v28, 6144, v28")
        A("v_and_b32 v29, 15, v0")
        A("v_lshlrev_b32 v29, 4, v29")
        A("v_add_u32 v28, v28, v29")
        A("v_and_b32 v29, 16, v29")
        A(f"s_lshr_b32 s{sT[1]}, s{sC}, 3")
        A(f"s_mul_i32 s{sT[1]}, s{sT[1]}, 6")
        A(f"s_add_u32 s{sT[1]}, s{sT[1]}, s{sW}")
        A(f"s_lshl_b32 s{sT[1]}, s{sT[1]}, 8")
        A(f"s_add_u32 s{sT[1]}, s{sT[1]}, s{sLOC}")
        A(f"s_add_u32 s{sT[1]}, s{sT[1]}, {QP0}")
        A(f"s_add_u32 s{sT[2]}, s{sLOC}, {QS0}")
        if not x_nog:
            A(f"buffer_load_dwordx4 v[24:27], v29, {srd(sWS)}, s{sT[2]} offen sc1")
            A(f"buffer_load_dwordx4 v[20:23], v28, {srd(sWS)}, s{sT[1]} offen sc1")
        A("L_q0iss:")

    def q0_finish():
        A(f"s_cmp_ge_u32 s{sW}, 6")
        A("s_cbranch_scc1 L_q0done")
        A("v_pk_add_f32 v[24:25], v[24:25], v[26:27]")
        A(f"s_lshl_b32 s{sT[1]}, s{sW}, 6")
        A("v_and_b32 v28, 31, v6")
        A("v_and_or_b32 v28, v0, 32, v28")
        A(f"v_add_u32 v28, s{sT[1]}, v28")
        A("v_lshrrev_b32 v29, 5, v0")
        A("v_lshlrev_b32 v29, 4, v29")
        A("v_and_or_b32 v29, v0, 15, v29")
        A(f"s_lshl_b32 s{sT[1]}, s{sW}, 7")
        A(f"v_lshl_add_u32 v29, v29, 2, s{sT[1]}")
        emit(weave(ln_mean(25, 1), ln_sq(24, 1), red_pair(20, 22), red_pair(21, 23)))
        emit(ln_rstd(24, 25))
        A(f"ds_write_b32 v29, v21 offset:{CS}")
        A("v_fma_f32 v20, -v25, v21, v20")
        A(f"v_mul_f32 v20, {hex(f2u(QSCALE))}, v20")
        A("v_mul_f32 v20, v20, v24")
        A("v_cvt_pk_bf16_f32 v20, v20, v20")
        A(f"ds_write_b16 v28, v20 offset:{QB}")
        if qsync:
            A("v_mov_b32 v30, 1")
            A("s_mov_b64 exec, 1")
            A(f"ds_add_u32 v13, v30 offset:{SL}")
            A("s_mov_b64 exec, -1")
        stamp(4)
        A("L_q0done:")

    def xa_off(dst, m, tmp):
        A(f"s_lshr_b32 s{tmp}, s{m}, 1")
        A(f"s_lshl1_add_u32 s{tmp}, s{tmp}, s{m}")
        A(f"s_lshl_b32 s{tmp}, s{tmp}, 12")
        A(f"s_mul_i32 s{dst}, s{sL}, {XA(1)-XA(0)}")
        A(f"s_add_u32 s{dst}, s{dst}, s{tmp}")
        A(f"s_add_u32 s{dst}, s{dst}, {XA(0)}")

    def xm_off(dst, j):
        A(f"s_and_b32 s{dst}, s{j}, 0x1c")
        A(f"s_add_u32 s{dst}, s{dst}, s{j}")
        A(f"s_lshl_b32 s{dst}, s{dst}, 11")
        A(f"s_add_u32 s{dst}, s{dst}, {XM}")

    def race(rnd):
        l = new("norace")
        A(f"s_cmp_lg_u32 s{sW}, 5")
        A(f"s_cbranch_scc1 {l}")
        ld = lambda d, c: f"s_load_dword s{d}, s[{sWS}:{sWS+1}], s{18+c} glc"
        if rnd == 0:
            A("s_and_b32 s18, s2, 0xc0")
            A("s_add_u32 s18, s18, s2")
            A("s_lshl_b32 s18, s18, 7")
            A(f"s_add_u32 s18, s18, {XA(0)}")
            A("s_add_u32 s19, s18, 8192")
            A(ld(16, 0))
            A(ld(17, 1))
        else:
            for c in range(2):
                lp = new("arr")
                A("s_waitcnt lgkmcnt(0)")
                A("s_mov_b32 s16, 0")
                A(f"s_mov_b32 s{sT[4+c]}, -4096")
                A(ld(16, c))
                A(f"{lp}:")
                A(f"s_add_u32 s{sT[4+c]}, s{sT[4+c]}, 1")
                A(f"s_cbranch_scc1 {lp}x")
                A("s_cmp_eq_u32 s16, 0")
                A(f"s_cbranch_scc1 {lp}")
                A(f"{lp}x:")
            A("s_waitcnt lgkmcnt(0)")
            A(f"s_cmp_lt_u32 s{sT[5]}, s{sT[4]}")
            A("s_cselect_b32 s16, 1, 0")
            A("v_mov_b32 v48, s16")
            A("v_mov_b32 v49, 0")
            A(f"ds_write_b32 v49, v48 offset:{SL+8}")
        A(f"{l}:")

    def warm(wave, lo=EEND, hi=LEND, t=32, sC=sRO):
        l = new("nowarm")
        A(f"s_cmp_lg_u32 s{sW}, {99 if x_nowarm else wave}")
        A(f"s_cbranch_scc1 {l}")
        A(f"s_lshl_b32 s{sM}, s{sC}, 12")
        A(f"s_add_u32 s{sM}, s{sM}, s{sLOC}")
        A(f"s_add_u32 s{sM}, s{sM}, {lo}")
        A(f"s_cmp_ge_u32 s{sC}, {(hi-lo+4095)//4096}")
        A(f"s_cbranch_scc1 {l}")
        A(f"v_lshlrev_b32 v{t}, 6, v0")
        A(f"buffer_load_dword v{4 if t == 32 else 31}, v{t}, {srd(sWS)}, s{sM} offen sc1")
        A(f"{l}:")

    def lane_off(which):
        if which == "K":
            A("v_and_b32 v1, 7, v0")
            A("v_mul_u32_u24 v8, 384, v1")
            A("v_and_b32 v1, 8, v0")
            A("v_lshl_add_u32 v8, v1, 3, v8")
            A("v_and_or_b32 v8, v0, 48, v8")
        else:
            A("v_lshrrev_b32 v9, 3, v0")
            A("v_mul_u32_u24 v9, 384, v9")
            A("v_and_b32 v1, 7, v0")
            A("v_lshl_add_u32 v9, v1, 4, v9")

    def setup_rest():
        A(f"s_mov_b32 s{sWO+2}, {0 if x_nowo else 7864320}")
        A(f"s_mov_b32 s{sRO}, s{sC}")
        if eb:
            A("s_mov_b32 s5, 256")
        for b, n in ((sK if vf else sV, 402653184), (sW1, 1966080), (sW2, 1966080), (sWS, WS_SIZE), (sX, 1280), (sB1, 3072), (sB2, 1280), (sOUT, 1280), (sDBG, 256)):
            A(f"s_mov_b32 s{b+2}, {n}")
        for b in (sK if vf else sV, sWO, sW1, sW2, sWS, sX, sB1, sB2, sOUT, sDBG):
            A(f"s_mov_b32 s{b+3}, 0x20000")
        A(f"s_lshl_b32 s{sLOC}, s{sR}, 17")
        A(f"s_mov_b32 s{sODD}, 0xaaaaaaaa")
        A(f"s_mov_b32 s{sODD+1}, 0xaaaaaaaa")
        A(f"s_mov_b32 s{sCNT}, {hex(0x40 if (x_nost or x_nog or x_noflag) else 0x400 if x_nw else 0x80000)}")
        A(f"s_mov_b32 s{sL}, 0")
        A(f"s_mov_b32 s{sSLOW}, 1")
        A(f"s_getreg_b32 s{sFB}, hwreg(HW_REG_XCC_ID, 0, 4)")
        A(f"s_or_b32 s{sFB}, s{sFB}, 0x80")
        lane_off("K" if vf else "V")
        A("v_and_b32 v2, 1, v0")
        A("v_mul_u32_u24 v1, 0xaaaa, v2")
        A("v_add_u32 v1, 0x4444, v1")
        A("v_lshlrev_b32 v2, 4, v2")
        A("v_and_b32 v13, 0x30, v0")
        A("v_lshl_or_b32 v2, v13, 1, v2")
        A("v_lshlrev_b32 v3, 6, v13")
        A("v_bfe_u32 v13, v0, 2, 2")
        A("v_lshl_or_b32 v3, v13, 7, v3")
        A("v_bfe_u32 v13, v0, 3, 2")
        A("v_lshl_or_b32 v3, v13, 5, v3")
        A("v_and_b32 v13, 3, v0")
        A("v_lshl_or_b32 v3, v13, 3, v3")
        A(f"s_lshl_b32 s{sT[1]}, s{sW}, 7")
        A("v_and_b32 v6, 0x30, v0")
        A("v_lshlrev_b32 v6, 1, v6")
        A("v_and_or_b32 v6, v0, 12, v6")
        A("v_bfe_u32 v13, v0, 1, 1")
        A("v_lshl_or_b32 v6, v13, 4, v6")
        A("v_and_b32 v13, 1, v0")
        A("v_lshl_or_b32 v6, v13, 1, v6")
        A(f"v_add_u32 v6, s{sT[1]}, v6")

    A("; ---- prologue")
    if d_dbg:
        A("s_memrealtime s[100:101]")
    sF, sG = (sV, sK) if vf else (sK, sV)
    seq = [("V", u) for u in range(vf)] + [("K", u) for u in range(8)] + [("V", u) for u in range(vf, 8)]
    A(f"s_load_dwordx2 s[{sF}:{sF+1}], s[0:1], {16 if vf else 8}")
    if ka2:
        A(f"s_load_dwordx2 s[{sWS}:{sWS+1}], s[0:1], 96")
    A(f"s_load_dwordx2 s[{sWQ}:{sWQ+1}], s[0:1], 24")
    A("s_cmp_ge_u32 s2, 256")
    A("s_cbranch_scc1 L_end")
    A("v_lshrrev_b32 v1, 6, v0")
    A(f"s_cmp_ge_u32 s2, {8 if cw1 else 0}")
    A(f"v_readfirstlane_b32 s{sW}, v1")
    A("s_cbranch_scc1 L_nocw")
    A(f"s_getpc_b64 s[{sPC}:{sPC+1}]")
    A("L_pc:")
    A("v_lshlrev_b32 v10, 6, v0")
    A("v_min_u32 v10, L_codeend-L_pc-4, v10")
    A("v_mov_b32 v11, 0")
    A(f"v_lshl_add_u64 v[10:11], v[10:11], 0, s[{sPC}:{sPC+1}]")
    A("global_load_dword v4, v[10:11], off")
    A("L_nocw:")
    if prof:
        for i in range(13):
            A(f"s_mov_b32 s{STAMP0+2*i}, 0")
        A("v_mov_b32 v7, 0")
    stamp(0, True)
    if d_late:
        A("s_and_b32 s90, s2, 7")
        A("s_cmp_lg_u32 s90, 3")
        A("s_cbranch_scc1 L_nolate")
        A(f"s_sleep {d_late}")
        A("L_nolate:")
    A(f"s_and_b32 s{sR}, s2, 7")
    A(f"s_lshr_b32 s{sC}, s2, 3")
    A(f"s_lshr_b32 s{sT[0]}, s2, 6")
    A(f"s_lshl2_add_u32 s{sT[0]}, s{sR}, s{sT[0]}")
    A(f"s_lshl_b32 s{sT[0]}, s{sT[0]}, 12")
    A(f"s_and_b32 s{sKV}, s2, 0x38")
    A(f"s_add_u32 s{sKV}, s{sKV}, s{sW}")
    A(f"s_add_u32 s{sKV}, s{sKV}, s{sT[0]}")
    A(f"s_addk_i32 s{sKV}, 3584")
    A(f"s_mul_i32 s{sKV}, s{sKV}, 3072")
    A("v_and_b32 v0, 63, v0")
    lane_off("V" if vf else "K")
    A(f"s_mov_b32 s{sF+2}, 402653184")
    A(f"s_mov_b32 s{sF+3}, 0x20000")
    def wq_addr():
        A(f"s_mov_b32 s{sWQ+2}, 7864320")
        A(f"s_mov_b32 s{sWQ+3}, 0x20000")
        A(f"s_and_b32 s{sT[1]}, s{sW}, 1")
        A(f"s_lshl_b32 s{sT[1]}, s{sT[1]}, 2")
        row128_voff(10, 12288, 12, 13, f"s{sT[1]}")
        A(f"s_and_b32 s{sT[5]}, s{sC}, 3")
        A(f"s_mul_i32 s{sT[5]}, s{sT[5]}, 20")
        A(f"s_and_b32 s{sT[6]}, s{sW}, 3")
        A(f"s_add_u32 s{sT[5]}, s{sT[5]}, s{sT[6]}")
        A(f"s_lshl_b32 s{sT[5]}, s{sT[5]}, 6")
        A(f"s_add_u32 s{sT[5]}, s{sT[5]}, s{sR}")
        A(f"s_mul_i32 s{sT[5]}, s{sT[5]}, 1536")
        A(f"s_and_b32 s{sT[1]}, s{sC}, 0x1c")
        A(f"s_lshr_b32 s{sT[2]}, s{sW}, 2")
        A(f"s_lshl1_add_u32 s{sT[1]}, s{sT[2]}, s{sT[1]}")
        A(f"s_lshl_b32 s{sT[1]}, s{sT[1]}, 6")
        A(f"s_add_u32 s{sT[5]}, s{sT[5]}, s{sT[1]}")
        A(f"s_addk_i32 s{sT[5]}, -512")
        A(f"s_mul_i32 s{sT[2]}, s{sT[2]}, 20")
        A(f"s_add_u32 s{sT[6]}, s{sT[6]}, s{sT[2]}")
        A(f"s_lshl_b32 s{sT[6]}, s{sT[6]}, 10")
        A(f"s_addk_i32 s{sT[6]}, {WQ}")
        A(f"s_mov_b32 s6, s{sT[5]}")
        A(f"s_mov_b32 s7, s{sT[6]}")

    second = seq.pop(9) if dbl0 else None
    if wf:
        wq_addr()
        A(f"s_cmp_lt_u32 s{sC}, 8")
    dm(100)
    A("s_waitcnt lgkmcnt(0)")
    dm(101)
    if wf:
        A("s_cbranch_scc1 L_wf0")
        dma(10, sWQ, 6, 7, 5, 32 * 12288, 4096)
        if wf == 2:
            A("s_branch L_wf1")
        A("L_wf0:")
    kv_unit(*seq[0])
    if dbl0 and not wf:
        kv_unit(*second)
    A("L_wf1:")
    dm(102)
    for b, off in ((sWS, 96), (sX, 0), (sG, 8 if vf else 16), (sWO, 32), (sW1, 48), (sB1, 56), (sW2, 64), (sB2, 72), (sOUT, 80), (sDBG, 88))[ka2:]:
        A(f"s_load_dwordx2 s[{b}:{b+1}], s[0:1], {off}")
    if not wf:
        wq_addr()
    A(f"s_cmp_lt_u32 s{sC}, 8")
    A("s_cbranch_scc1 L_nowq")
    n0 = (0, 5, 2, 3)[smode]
    if n0 and not wf:
        dma(10, sWQ, 6, 7, n0, 32 * 12288, 4096, True)
    A("L_nowq:")
    setup_rest()
    A(f"s_and_b32 s{sT[3]}, s{sC}, 3")
    dm(103)
    A("s_waitcnt lgkmcnt(0)")
    dm(104)
    A(f"s_cmp_lg_u32 s{sW}, 7")
    A("s_cbranch_scc1 L_nox0")
    A(f"s_mul_i32 s{sT[5]}, s{sT[3]}, 320")
    A("v_and_b32 v15, 0x3c, v0")
    for i in range(5):
        A(f"buffer_load_dword v{52+i}, v15, {srd(sX)}, s{sT[5]} offen offset:{64*i}")
    A("L_nox0:")
    def report(site):
        A(f"s_cmp_lg_u32 s3, {site}")
        A(f"s_cbranch_scc1 L_norep{site}")
        A("s_mov_b64 exec, 1")
        if not x_noflag & 1:
            A(f"buffer_atomic_or v62, v63, {srd(sDBG)}, 0 offen sc1")
        A("s_mov_b64 exec, -1")
        stamp(5)
        A(f"L_norep{site}:")

    A("s_mov_b32 s3, 0")
    A("v_mov_b32 v63, 0")
    A(f"s_cmp_eq_u32 s{sW}, 3")
    A("s_cbranch_scc1 L_w3")
    A("L_w3back:")
    report(1)
    A("v_bfe_u32 v12, v0, 1, 1")
    A("v_mul_u32_u24 v12, 384, v12")
    A("v_add_u32 v12, v12, v2")
    A(f"s_cmp_lt_u32 s{sC}, 8")
    if woe:
        A("s_cbranch_scc1 L_woe")
    wstep = nstep[0]
    wait(0)
    if wf:
        if wf == 2:
            A("s_cbranch_scc1 L_wf2")
            kv_unit(*seq[0])
            A("L_wf2:")
        kv_unit(*second)
        report(2)
        wait(0)
    elif n0 < 5:
        if not woe:
            A("s_cbranch_scc1 L_nowq2")
        if n0 == 0:
            dma(10, sWQ, 6, 7, 3, 32 * 12288, 4096, True)
            wait(0)
        dma(10, sWQ, 6, 7, 2 if n0 in (0, 3) else 3, 32 * 12288, 4096)
        report(2)
        wait(0)
        A("L_nowq2:")
    kv_unit(*seq[1])
    report(3)
    A(f"s_cmp_eq_u32 s{sW}, 7")
    A("s_cbranch_scc1 L_w7")
    A("L_w7back:")
    A("s_barrier")
    stamp(1)
    def q0_tile():
        A(f"s_cmp_lt_u32 s{sC}, 8")
        A("s_cbranch_scc1 L_noq0")
        for kb in range(3):
            A(f"ds_read_b128 {vr(44+4*kb,4)}, v12 offset:{XB+128*kb}")
        q_operand(sW)
        for r in range(40, 44):
            A(f"v_mov_b32 v{r}, 0")
        A("s_waitcnt lgkmcnt(0)")
        q_matvec(44)
        A("v_add_f32 v40, v40, v41")
        A("v_add_f32 v41, v42, v43")
        A("L_noq0:")

    if q0_at == 1:
        q0_tile()
    units = seq[2:9 + att_at]
    fstep = None
    for n, (which, u) in enumerate(units):
        k = n + 2
        if k == f1_at + 3:
            A("s_cbranch_vccnz L_flag2")
            fstep = nstep[0]
        if k == 13:
            wait_unless(th5)
        else:
            wait(0)
        if k == f1_at + 3:
            A("L_flagged2:")
        if tk and k == tk:
            A("v_and_b32 v31, 31, v0")
            A("v_lshlrev_b32 v31, 2, v31")
            A(f"s_add_u32 s{sT[3]}, s{sLOC}, {F2}")
            A(f"buffer_load_dword v31, v31, {srd(sWS)}, s{sT[3]} offen sc1")
        if gk and k in (gk, gk + 1, gk + 2):
            l = new("nog")
            A(f"s_cmp_lg_u32 s{sW}, 7")
            A(f"s_cbranch_scc1 {l}")
            if k == gk:
                A("v_mov_b32 v4, -9")
                A(f"s_cmp_lt_u32 s{sC}, 8")
                A(f"s_cbranch_scc1 {l}")
            else:
                if k == gk + 1:
                    A("v_readfirstlane_b32 s5, v4")
                A(f"s_cmp_lg_u32 s5, {gm-1}")
                A(f"s_cbranch_scc1 {l}")
            A("s_mov_b64 exec, 1")
            if k < gk + 2:
                A("v_mov_b32 v4, 1")
                A(f"v_mov_b32 v5, {F2+384 if k == gk else F2+512}")
                A(f"buffer_atomic_add v4, v5, {srd(sWS)}, {f's{sLOC}' if k == gk else 0} offen sc0 sc1")
            else:
                A("v_add_u32 v4, 1, v4")
                A(f"v_mov_b32 v5, {F2+640}")
                A(f"buffer_store_dword v4, v5, {srd(sWS)}, s{sLOC} offen")
            A("s_mov_b64 exec, -1")
            A(f"{l}:")
        if gk and k == 11:
            A(f"v_mov_b32 v8, {F2+640}")
            A(f"buffer_load_dword v8, v8, {srd(sWS)}, s{sLOC} offen sc1")
        if rk and k == rk:
            ticket()
        if tk2 and k == tk2:
            A("v_and_b32 v8, 31, v0")
            A("v_lshlrev_b32 v8, 2, v8")
            A(f"s_add_u32 s{sT[3]}, s{sLOC}, {QS1+128}")
            A(f"buffer_load_dword v8, v8, {srd(sWS)}, s{sT[3]} offen sc1")
            A(f"s_cmp_lg_u32 s{sW}, {pw}")
            A("s_cbranch_scc1 L_nopost")
            only_lanes(30, 0)
            A(f"s_lshl2_add_u32 s{sT[3]}, s{sC}, s{sT[3]}")
            A(f"buffer_store_dword v13, v30, {srd(sWS)}, s{sT[3]} offen")
            A("L_nopost:")
        if k == f1_at:
            A("v_lshlrev_b32 v14, 2, v0")
            if f1w:
                A(f"s_cmp_lg_u32 s{sW}, 0")
                A("s_cbranch_scc1 L_nof1")
            if not x_noflag & 2:
                A(f"buffer_load_dword v13, v14, {srd(sDBG)}, 0 offen sc1")
            A("L_nof1:")
        if k == 8 + f2_at:
            A("v_and_b32 v29, 31, v0")
            A("v_lshlrev_b32 v29, 2, v29")
            A(f"s_add_u32 s{sT[3]}, s{sLOC}, {F2}")
            A(f"buffer_load_dword v28, v29, {srd(sWS)}, s{sT[3]} offen sc1")
        if k == 8 + f2_at + 2 and warm_at >= 3:
            warm(6, 0, LEND if warm_at == 3 else EEND, 30, sC)
        kv_unit(which, u)
        if gk and k == 12:
            A(f"v_readfirstlane_b32 s{sT[1]}, v8")
            A(f"s_cmp_lt_u32 s{sT[1]}, 8")
            A(f"s_cselect_b32 s{sT[1]}, s{sT[1]}, {go}")
            if prof:
                A(f"v_writelane_b32 v7, s{sT[1]}, 47")
            A(f"s_sub_u32 s{sT[1]}, s{sT[1]}, {go}")
            A(f"s_mul_i32 s{sT[1]}, s{sT[1]}, {gs}")
            A(f"s_add_u32 s1, s1, s{sT[1]}")
            if prof:
                A("v_writelane_b32 v7, s1, 45")
        if rk and k == rk + 1:
            role_write()
        if tk and k == tk + 1:
            A("v_cmp_ne_u32 vcc, -1, v31")
            A("s_bcnt1_i32_b32 s1, vcc_lo")
            if prof:
                A("v_writelane_b32 v7, s1, 45")
        if k - vf in (2, 4, 6, 8):
            relayout((k - vf) // 2 - 1)
        if k == q0_at:
            q0_tile()
        if k == f1_at:
            race(0)
        if k == f1_at + 1:
            phase2()
            race(1)
        if k == f1_at + 2:
            A("v_mov_b32 v12, 0")
            A("v_mov_b32 v15, 1")
            A("s_mov_b64 exec, 1")
            A(f"ds_add_rtn_u32 v12, v12, v15 offset:{SL+4}")
            A("s_waitcnt lgkmcnt(0)")
            A("v_cmp_eq_u32 vcc, 7, v12")
            A("s_mov_b64 exec, -1")
        if k == 9:
            att_consts()
            att_zero()
            A(f"s_lshl_b32 s{sT[1]}, s{sW}, 10")
            A(f"v_lshl_add_u32 v48, v0, 4, s{sT[1]}")
            A(f"ds_write_b128 v48, v[32:35] offset:{PB}")
            poison_rb()
        if k == 8 + f2_at + 1:
            q0_gather()
        if k == 8 + f2_at + 2:
            q0_finish()
    assert f1_at + 3 <= 9 and f2_at + 2 <= att_at
    stamp(2)
    flush(48)
    if qsync:
        A("L_qspin:")
        A(f"ds_read_b32 v21, v13 offset:{SL}")
        A("s_waitcnt lgkmcnt(0)")
        A("v_cmp_ne_u32 vcc, 6, v21")
        A("s_cbranch_vccnz L_qspin")
        stamp(0)
        A("s_branch L_att2")
    stamp(0)

    place("att")
    A("L_att:")
    if endmode:
        A("s_mov_b64 vcc, 0")
    pt(0)
    A("s_waitcnt lgkmcnt(0)")
    A("L_att1:")
    A("s_barrier")
    A("L_att2:")
    pt(1)
    for t in range(3):
        A(f"ds_read_b128 {vr(20+4*t,4)}, v2 offset:{QB+128*t}")
    A(f"s_cmp_ge_u32 s{sW}, 4")
    A("s_cbranch_scc1 L_att_b")

    def score(T):
        o = [f"v_add_f32_dpp v48, v{32+4*T}, v{33+4*T} quad_perm:[0,1,2,3] row_mask:{hex(1<<T)} bank_mask:0xf"]
        if T == 0:
            return o + ["v_add_f32 v50, v32, v33"]
        return o + [f"v_add_f32 v49, v{32+4*T}, v{33+4*T}", "v_max_f32 v50, v50, v49"]

    prd = lambda sp: f"ds_read_b128 {vr(20+4*sp,4)}, v16 offset:{256*sp}"

    def qk_softmax(cls):
        for t in range(3):
            lgk(2 - t)
            A(f"v_smfmac_f32_16x16x64_bf16 v[32:35], {vr(20+4*t,4)}, {vr(KB+8*t,8)}, v1")
        pt(2)
        sal = [f"s_mul_i32 s{sT[1]}, s{sL}, {OP(1)}", f"s_add_u32 s{sT[1]}, s{sT[1]}, s{sLOC}",
               f"s_add_u32 s{sT[3]}, s{sT[1]}, {LSE(0)}"]
        if strict:
            fills = {3: sal[:1], 4: sal[1:2], 5: sal[2:], 7: score(0)[:1], 8: score(0)[1:], 10: score(1)[:1], 11: score(1)[1:]}
        else:
            fills = {6: score(0)[:1], 7: score(0)[1:], 9: score(1)[:1], 10: score(1)[1:2], 11: score(1)[2:]}
        for T in range(1, 4):
            for t in range(3):
                A(f"v_smfmac_f32_16x16x64_bf16 {vr(32+4*T,4)}, {vr(20+4*t,4)}, {vr(KB+24*T+8*t,8)}, v1")
                if 3 * T + t == 11:
                    pt(3)
                    if prio and cls == "b":
                        A("s_setprio 2")
                emit(fills.get(3 * T + t, []))
        emit(score(2))
        if not strict:
            emit(sal)
        sc3 = score(3)
        emit(sc3[1:])
        A(sc3[0])
        emit([f"v_max_f32_dpp v50, v50, v50 {m}" for m in (XOR1, XOR2, HMIR, MIR)])
        A("v_ceil_f32 v50, v50")
        pt(4)
        A("v_sub_f32 v48, v48, v50")
        A("v_exp_f32 v48, v48")
        A(f"s_cmp_lg_u32 s{sL}, 0")
        A("v_cvt_pk_bf16_f32 v49, v48, v13")
        A("ds_write2_b32 v15, v49, v49 offset0:0 offset1:5")
        if cls == "b":
            A(f"ds_write_b32 v10, v50 offset:{MLB}")
        for sp in range(4):
            A(prd(sp))
        if cls == "a":
            A(f"ds_write_b32 v10, v50 offset:{MLB}")
        if eb & 16:
            A(f"v_cmp_u_f32 s[{sM}:{sM+1}], v48, v48")
        A("s_cbranch_scc0 L_l0")
        if eb & 16:
            A(f"s_cmp_lg_u64 s[{sM}:{sM+1}], 0")
            A(f"s_cbranch_scc1 L_redoq{cls}")
            ool.append([f"L_redoq{cls}:", "s_sub_u32 s5, s5, 1", f"s_cbranch_scc1 L_redoq{cls}t", "s_waitcnt lgkmcnt(0)"]
                       + [f"v_mov_b64 v[{r}:{r+1}], 0" for r in range(32, 48, 2)] + ["s_setprio 0", "s_branch L_att2",
                       f"L_redoq{cls}t:", "s_mov_b32 s5, 0", f"s_branch L_pv_{cls}"])
        A(f"L_pv_{cls}:")

    lsum = [f"v_add_f32_dpp v51, v48, v48 {XOR1}"] + [f"v_add_f32_dpp v51, v51, v51 {m}" for m in (XOR2, HMIR, MIR)] + [
        "v_add_f32_dpp v51, v51, v51 row_bcast:15 row_mask:0xa bank_mask:0xf", "v_add_f32_dpp v51, v51, v51 row_bcast:31 row_mask:0xc bank_mask:0xf",
        f"ds_write_b32 v10, v51 offset:{MLB+512}"]

    def o_piece(t):
        return [f"v_cvt_pk_bf16_f32 v{52+4*t}, v{52+4*t}, v{53+4*t}", f"v_cvt_pk_bf16_f32 v{54+4*t}, v{54+4*t}, v{55+4*t}",
                f"ds_write2_b32 v17, v{52+4*t}, v{54+4*t} offset0:{32*t} offset1:{32*t+4}"]

    def pv(extra, waits, cls):
        tmaj = tma if cls == "a" else tmb
        order = [(sp, t) for t in range(3) for sp in range(4)] if tmaj else [(sp, t) for sp in range(4) for t in range(3)]
        extra = {k: list(extra.get(k, [])) for k in range(12)}
        if tmaj:
            extra[6] += o_piece(0)[:2]
            extra[7] += o_piece(0)[2:]
            extra[10] += o_piece(1)[:2]
            extra[11] += o_piece(1)[2:]
        for i, (sp, t) in enumerate(order):
            if i in waits:
                lgk(waits[i])
            if i == (3 if tmaj else 9):
                if endmode == 0:
                    A("s_waitcnt vmcnt(6)")
                else:
                    A(f"s_cbranch_vccnz L_l0{cls}")
                    A(f"L_pv3{cls}:")
                stamp(1)
            A(f"v_smfmac_f32_16x16x64_bf16 {vr(52+4*t,4)}, {vr(20+4*sp,4)}, {vr(VB+24*sp+8*t,8)}, v14")
            emit(extra[i])
        return (2,) if tmaj else (0, 1, 2)

    if prio:
        A("s_setprio 1")
    qk_softmax("a")
    emit(lsum[:na])
    pt(5)
    ex = {k: [] for k in range(12)}
    for i, x in enumerate(lsum[na:]):
        ex[min(2 * i, 11)].append(x)
    ex[bar_at].append("s_barrier")
    ex[8].append(f"ds_read_b128 v[40:43], v13 offset:{MLB}")
    ex[9].append(f"ds_read_b128 v[44:47], v13 offset:{MLB+16}")
    ex[10].append(f"ds_read_b64 v[38:39], v12 offset:{MLB}")
    rest = pv(ex, {0: 4, 1: 3, 2: 2, 3: 1, 5: 0} if tma else {0: 4, 3: 0}, "a")
    pt(8)
    if prio and not aprio:
        A("s_setprio 0")
    for t in rest:
        emit(o_piece(t))
    lgk(2 if tma else 3)
    A("v_max3_f32 v40, v40, v41, v42")
    A("v_max3_f32 v43, v43, v44, v45")
    A("v_max3_f32 v40, v40, v46, v47")
    A("v_max_f32 v40, v40, v43")
    A("v_sub_f32 v38, v38, v40")
    A("v_sub_f32 v39, v39, v40")
    A("v_exp_f32 v38, v38")
    A("v_exp_f32 v39, v39")
    A("v_cvt_pk_bf16_f32 v38, v38, v38")
    A("v_cvt_pk_bf16_f32 v39, v39, v39")
    for i in range(3):
        for h in range(2):
            A(f"v_cndmask_b32 v{42+2*i+h}, v13, v{38+h}, s[{TMASK[i]}:{TMASK[i]+1}]")
    A(f"s_cmp_lg_u32 s{sSLOW}, 0")
    A("s_waitcnt lgkmcnt(0)")
    pt(9)
    A("s_barrier")
    pt(11)
    for i in range(3):
        A(f"ds_read_b64_tr_b16 {vr(20+2*i,2)}, v18 offset:{OB+32*i}")
    for i in range(3):
        lgk(2 - i)
        A(f"v_mfma_f32_16x16x16_bf16 v[28:31], {vr(20+2*i,2)}, {vr(42+2*i,2)}, {'v[28:31]' if i else 0}")
    pt(12)
    A("v_cvt_pk_bf16_f32 v28, v28, v29")
    A("v_cvt_pk_bf16_f32 v29, v30, v31")
    lstore([f"buffer_store_dwordx2 v[28:29], v19, {srd(sWS)}, s{sT[1]} offen"], cmp=False)
    pt(13)
    A("s_branch L_attdone")
    A("; ---- waves 4..7 ----")
    place("attb")
    A("L_att_b:")
    hit[0] = prof == 4 or (prof == 3 and (at == 1 or ref > 13))
    qk_softmax("b")
    pt(5)
    emit(lsum[:nb])
    lgk(4)
    pt(6)
    A("s_barrier")
    A(f"ds_read_b32 v40, v11 offset:{MLB}")
    emit(weave(lsum[nb:4], ["v_min_u32 v39, 1, v0", "v_lshlrev_b32 v39, 30, v39", f"s_lshl3_add_u32 s{sT[4]}, s{sC}, s{sT[3]}", f"s_cmp_lg_u32 s{sW}, 7"]))
    if prio:
        A("s_setprio 1")
    pt(7)
    rest = pv({0: [lsum[4]], 2: [lsum[5]], 3: [f"v_max_f32_dpp v42, v40, v40 {XOR1}"], 4: [lsum[6]], 5: [f"v_max_f32_dpp v42, v42, v42 {XOR2}"],
               7: [f"v_max_f32_dpp v42, v42, v42 {HMIR}"], 8: ["v_sub_f32 v40, v40, v42"], 9: ["v_exp_f32 v40, v40"]}, {0: 1, 3: 0}, "b")
    pt(8)
    for t in rest:
        emit(o_piece(t))
    lwait(32)
    pt(9)
    A("s_barrier")
    A("s_cbranch_scc1 L_attdone")
    A(f"ds_read_b32 v41, v11 offset:{MLB+512}")
    A(f"s_cmp_lg_u32 s{sSLOW}, 0")
    A("s_waitcnt lgkmcnt(0)")
    A("v_mul_f32 v43, v40, v41")
    allred8("v_add_f32", 43, 43)
    lstore([f"buffer_store_dwordx2 v[42:43], v39, {srd(sWS)}, s{sT[4]} offen"], cmp=False)
    pt(13)
    A("L_attdone:")
    A(f"s_mov_b32 s{sPUB}, 0")
    if prio:
        A("s_setprio 0")
    stamp(2)
    A(f"s_cmp_ge_u32 s{sRO}, 20")
    A("s_cbranch_scc1 L_notO")

    A(f"s_cmp_lt_u32 s{sW}, 2")
    A("s_cbranch_scc1 L_so_fin")
    A("v_add_u32 v63, s8, v3")
    A(f"s_cmp_lg_u32 s{sL}, 0")
    A("s_cbranch_scc0 L_so_l0")
    A("L_wo_ok:")
    def so_reads(lo, hi):
        for T in range(lo, hi):
            if T:
                A(f"v_xor_b32 v62, {32*T}, v63")
            for q in range(4):
                A(f"ds_read_b64_tr_b16 {vr(24+8*T+2*q,2)}, v{62 if T else 63} offset:{(q>>1)*4096+(q&1)*512}")

    if sob == 3:
        A(f"s_cmp_ge_u32 s{sW}, 4")
        A("s_cbranch_scc1 L_so_b")
        A("s_barrier")
    if sob == 4:
        A(f"s_sub_u32 s{sT[4]}, s{sW}, 4")
        A(f"s_cmp_lt_u32 s{sT[4]}, 3")
        A("s_cbranch_scc1 L_so_b")
        so_reads(0, sobn)
        A("s_barrier")

    def so_shadow(clear=True, lo=0):
        so_reads(lo, 4)
        if clear:
            zero(8, 24)
        A("v_lshl_add_u32 v63, v0, 2, s9")
        if clear and sob == 2:
            A("s_barrier")
        A("s_waitcnt lgkmcnt(0)")
        if clear and sob == 1:
            A("s_barrier")

    def so_check():
        A("s_waitcnt vmcnt(0)")
        A("v_max3_u32 v62, v60, v56, v57")
        A("v_max3_u32 v62, v62, v58, v59")
        A("v_cmp_eq_u32 vcc, -1, v62")

    so_loads = [f"buffer_load_dword v60, v5, {srd(sWS)}, s{sT[3]} offen sc1",
                f"buffer_load_dwordx4 v[56:59], v4, {srd(sWS)}, s{sT[1]} offen sc1"]
    so_mid = poll(so_loads, so_check, (lambda: so_shadow(True, sobn)) if sob == 4 else so_shadow, True, sf & 1)
    pt(20)
    stamp(3)
    mx = [f"v_max_f32_dpp v62, v60, v60 {XOR1}", f"v_max_f32_dpp v62, v62, v62 {XOR2}", f"v_max_f32_dpp v62, v62, v62 {HMIR}", "v_sub_f32 v62, v60, v62"]
    for T in range(4):
        A(f"v_smfmac_f32_16x16x64_bf16 {vr(8+4*T,4)}, v[56:59], {vr(24+8*T,8)}, v1")
        A(mx[T])
    A("v_exp_f32 v62, v62")
    A(f"v_mul_f32_dpp v61, v60, v62 row_ror:8 {FULL}")
    A(f"v_mov_b32_dpp v56, v62 row_newbcast:0 {FULL}")
    A(f"v_mov_b32_dpp v57, v62 row_newbcast:1 {FULL}")
    sm = [f"v_add_f32_dpp v61, v61, v61 {XOR1}", f"v_add_f32_dpp v61, v61, v61 {XOR2}", f"v_add_f32_dpp v61, v61, v61 {HMIR}", f"v_rcp_f32_dpp v61, v61 row_newbcast:0 {FULL}"]
    for T in range(4):
        A(sm[T])
        A(f"v_pk_mul_f32 {vr(8+4*T,2)}, {vr(8+4*T,2)}, v[56:57] op_sel:[0,0] op_sel_hi:[1,0]")
        A(f"v_pk_fma_f32 {vr(8+4*T,2)}, {vr(10+4*T,2)}, v[56:57], {vr(8+4*T,2)} op_sel:[0,1,0] op_sel_hi:[1,1,1]")
    for T in (0, 1, 2, 3):
        A(f"v_add_f32 v{8+T}, v{8+4*T}, v{9+4*T}")
    pt(21)
    emit(red_quad(8))
    A("v_mul_f32 v8, v8, v61")
    pt(22)
    if eb & 1:
        A(f"s_cmp_lg_u32 s{sW}, {99 if tod else 6}")
    ewrite(1, f"ds_write_b32 v63, v8 offset:{RB-512}", "L_eb1")
    if not eb & 1:
        A(f"s_cmp_lg_u32 s{sW}, {99 if tod else 6}")
    lwait(1)
    pt(23)
    A("s_barrier")
    A("L_eb1:")
    A("s_cbranch_scc1 L_sodone")
    A("L_so_trig:")
    only_lanes(17, 0)
    A(f"s_lshl_b32 s{sT[5]}, s{sL}, 9")
    A(f"s_lshl2_add_u32 s{sT[5]}, s{sRO}, s{sT[5]}")
    A(f"s_add_u32 s{sT[5]}, s{sT[5]}, s{sLOC}")
    A(f"s_add_u32 s{sT[5]}, s{sT[5]}, {XL(0)}")
    lstore([f"buffer_store_dword v17, v17, {srd(sWS)}, s{sT[5]} offen"])
    A("s_branch L_sodone")
    if sob >= 3:
        place("sob")
        A("L_so_b:")
        so_shadow()
        A("s_barrier")
        if dly:
            for i in range(dly.get(1, 0)):
                A("s_nop 3")
                A("s_nop 3")
        emit(so_loads)
        A(f"s_branch {so_mid}")
    A("L_so_l0:")
    zero(8, 24)
    A("s_waitcnt vmcnt(0)")
    if sl0 == 1:
        emit(so_loads)
    A("s_barrier")
    stamp(5, True)
    if sl0 == 0:
        A("s_branch L_wo_ok")
    if sl0 == 2:
        emit(so_loads)
    so_shadow(False)
    A(f"s_branch {so_mid}")
    place("fin")
    A("L_so_fin:")
    A(f"s_cmp_lg_u32 s{sL}, 0")
    A("s_cbranch_scc1 L_so_norst2" if sob else "s_cbranch_scc1 L_so_fin1")
    A(f"s_cmp_lg_u32 s{sW}, 1")
    A("s_cbranch_scc1 L_so_norst")
    A(f"s_mul_i32 s{sT[4]}, s{sR}, 20")
    A(f"s_add_u32 s{sT[4]}, s{sT[4]}, s{sRO}")
    A(f"s_lshl_b32 s{sT[4]}, s{sT[4]}, 10")
    A(f"s_add_u32 s{sT[4]}, s{sT[4]}, {XA(1)}")
    for r in range(20, 24):
        A(f"v_mov_b32 v{r}, -1")
    A("v_lshlrev_b32 v12, 4, v0")
    A(f"buffer_store_dwordx4 v[20:23], v12, {srd(sWS)}, s{sT[4]} offen sc1")
    A("s_waitcnt vmcnt(1)")
    A("s_barrier")
    A("s_waitcnt vmcnt(0)")
    A("s_branch L_so_fin1")
    A("L_so_norst:")
    A("s_waitcnt vmcnt(0)")
    A("L_so_norst2:")
    A("s_barrier")
    A("L_so_fin1:")
    A(f"s_and_b32 s{sT[2]}, s{sRO}, 1")
    A("v_lshlrev_b32 v12, 2, v0")
    A(f"s_lshr_b32 s{sT[5]}, s{sRO}, 1")
    xa_off(sT[4], sT[5], sT[6])
    A(f"s_lshl1_add_u32 s{sT[5]}, s{sR}, s{sT[2]}")
    A(f"s_lshl_b32 s{sT[5]}, s{sT[5]}, 8")
    A(f"s_add_u32 s{sT[4]}, s{sT[4]}, s{sT[5]}")
    A(f"s_lshl_b32 s{sT[5]}, s{sW}, 13")
    A(f"s_add_u32 s{sT[4]}, s{sT[4]}, s{sT[5]}")
    A("s_barrier")
    A("L_rd1:")
    for i in range(3):
        A(f"ds_read2st64_b32 {vr(20+2*i,2)}, v12 offset0:{RB//256+2*i} offset1:{RB//256+2*i+1}")
    lgk(1)
    A("v_pk_add_f32 v[20:21], v[20:21], v[22:23]")
    A("s_waitcnt lgkmcnt(0)")
    A("v_pk_add_f32 v[20:21], v[20:21], v[24:25]")
    A("v_add_f32 v20, v20, v21")
    pt(24)
    A(f"buffer_store_dword v20, v12, {srd(sWS)}, s{sT[4]} offen sc1")
    pt(25)
    redo(1, "L_rd1", 20, 20, [])
    stamp(4)
    if tod:
        A(f"s_cmp_eq_u32 s{sW}, 0")
        A("s_cbranch_scc1 L_so_trig")
    if pads and "q" in pads:
        A("s_branch L_sodone")
    place("q")
    A("L_sodone:")
    A("L_after_role:")
    A(f"s_cmp_lg_u32 s{sL}, 0")
    A("s_cbranch_scc1 L_exit")
    writeback(4)
    if warm_at in (2, 4):
        warm(1)

    def trig_check():
        A("v_max_u32 v44, v44, v45")
        A("v_cmp_eq_u32 vcc, -1, v44")

    def trig_poll(n=2):
        A(f"v_min_u32 v58, {n-1}, v0")
        A("v_lshlrev_b32 v58, 2, v58")
        ld = lambda i: f"buffer_load_dword v{60+i}, v58, {srd(sWS)}, s{sT[5]} offen sc1"
        if td == 1:
            poll([ld(0)], lambda: A("v_cmp_eq_u32 vcc, -1, v60"))
            return
        top, done = new("tp"), new("td")
        for i in range(td - 1):
            A(ld(i))
        A(f"{top}:")
        for i in range(td):
            A(ld((i + td - 1) % td))
            if i == 0:
                A(f"s_sub_u32 s{sCNT}, s{sCNT}, 1")
                A(f"s_cbranch_scc1 {done}t")
            A(f"s_waitcnt vmcnt({td-1})")
            A(f"v_cmp_eq_u32 vcc, -1, v{60+i}")
            A(f"s_cbranch_vccz {done}" if i < td - 1 else f"s_cbranch_vccnz {top}")
        A(f"{done}:")
        ool.append([f"{done}t:", f"s_mov_b32 s{sCNT}, 0", f"s_branch {done}"])

    def q_prep():
        q_operand(sW)
        zero(40, 44)
        only_lanes(56, 4)
        A("v_lshl_or_b32 v56, v0, 4, v56")
        A(f"s_mul_i32 s{sT[2]}, s{sT[0]}, 3072")
        A(f"s_and_b32 s{sT[1]}, s{sC}, 0x1c")
        A(f"s_lshr_b32 s{sT[3]}, s{sW}, 2")
        A(f"s_lshl1_add_u32 s{sT[1]}, s{sT[3]}, s{sT[1]}")
        A(f"s_lshl_b32 s{sT[1]}, s{sT[1]}, 7")
        A(f"s_add_u32 s{sT[1]}, s{sT[1]}, s{sT[2]}")
        A(f"s_and_b32 s{sT[3]}, s{sW}, 3")
        A(f"s_lshl2_add_u32 s{sT[1]}, s{sT[3]}, s{sT[1]}")
        A(f"s_add_u32 s{sT[1]}, s{sT[1]}, s{sLOC}")
        A(f"s_add_u32 s{sT[6]}, s{sT[1]}, {QP1 - 8*128}")
        if not qa:
            A("s_waitcnt lgkmcnt(0)")

    if qa:
        A(f"s_cmp_ge_u32 s{sW}, 4")
        A("s_cbranch_scc1 L_q_noac")
    att_consts()
    A("L_q_noac:")
    A(f"s_and_b32 s{sT[0]}, s{sC}, 3")
    A(f"s_cmp_lg_u32 s{sPUB}, 0")
    A("s_cbranch_scc1 L_q_late")
    q_prep()
    A(f"s_cmp_lt_u32 s{sW}, 4")
    A("s_cbranch_scc1 L_q_wait")
    A(f"s_cmp_eq_u32 s{sW}, 7")
    A("s_cbranch_scc1 L_q_trig")
    A(f"s_and_b32 s{sT[2]}, s{sC}, 0x1c")
    A(f"s_cmp_eq_u32 s{sT[2]}, 4")
    A("s_cbranch_scc1 L_q_trig2" if qa else "s_cbranch_scc1 L_q_wait")
    A(f"s_lshl_b32 s{sT[2]}, s{sW}, 4")
    A(f"s_addk_i32 s{sT[2]}, -64")
    A(f"v_and_or_b32 v8, v0, 15, s{sT[2]}")
    A("v_cmp_gt_u32 vcc, 40, v8")
    A(f"s_mul_i32 s{sT[3]}, s{sT[0]}, 40")
    A(f"v_add_u32 v8, s{sT[3]}, v8")
    A("v_lshrrev_b32 v9, 4, v8")
    A("v_and_b32 v57, 12, v9")
    A("v_add_u32 v9, v9, v57")
    A("v_and_b32 v8, 15, v8")
    A("v_and_or_b32 v8, v0, 48, v8")
    A("v_lshlrev_b32 v8, 4, v8")
    A("v_lshl_or_b32 v8, v9, 11, v8")
    A(f"v_mov_b32 v9, {OOB}")
    A("v_cndmask_b32 v8, v9, v8, vcc")
    x64_addr(9, 57)
    A(f"s_lshl_b32 s{sT[2]}, s{sT[2]}, 3")
    A(f"v_add_u32 v9, s{sT[2]}, v9")
    A(f"s_add_u32 s{sT[4]}, s{sNEAR}, {XM}")
    poison(8, f"ds_write_b16 v9, v57 offset:{XB}", 57)
    if eb & 8:
        A("s_waitcnt lgkmcnt(0)")
    A("s_barrier")
    pt(49)
    stamp(8)
    def q_post():
        emit(red_quad(44))
        A("v_cvt_pk_bf16_f32 v45, v44, v44")
        if ebf & 8:
            A(f"s_cmp_lt_u32 s{sC}, 8")
        ewrite(8, f"ds_write_b16 v9, v45 offset:{XB}", "L_eb8")

    gather64(2, sT[4], att_consts if qa else None, q_post if lc & 1 else None)
    stamp(9)
    pt(50)
    if not lc & 1:
        q_post()
    A("L_q_bar:")
    A(f"s_cmp_lt_u32 s{sC}, 8")
    lwait(8)
    pt(51)
    A("s_barrier")
    A("L_eb8:")
    A("s_cbranch_scc1 L_hq")
    A("L_rd8:")
    for kb in range(3):
        A(f"ds_read_b128 {vr(44+4*kb,4)}, v2 offset:{XB+128*kb}")
    A(f"s_cmp_lg_u32 s{sSLOW}, 0")
    q_matvec(44, True)
    pt(52)
    A("v_add_f32 v40, v40, v41")
    lstore([f"buffer_store_dword v40, v56, {srd(sWS)}, s{sT[6]} offen"], cmp=False)
    pt(53)
    redo(8, "L_rd8", 40, 40, ["v_mov_b64 v[40:41], 0", "v_mov_b64 v[42:43], 0"])
    stamp(10)

    A("L_hq:")
    A(f"s_mov_b32 s{sL}, 1")
    A(f"s_cmp_ge_u32 s{sW}, 3")
    A("s_cbranch_scc1 L_hq_idle")
    A("v_lshrrev_b32 v8, 4, v0")
    A("v_mul_u32_u24 v8, 3072, v8")
    A("v_and_b32 v9, 15, v0")
    A("v_lshlrev_b32 v9, 4, v9")
    A("v_add_u32 v8, v8, v9")
    A("v_and_b32 v9, 7, v0")
    A("v_lshlrev_b32 v9, 2, v9")
    A(f"s_lshr_b32 s{sT[0]}, s{sC}, 3")
    A(f"s_mul_i32 s{sT[0]}, s{sT[0]}, 3")
    A(f"s_add_u32 s{sT[0]}, s{sT[0]}, s{sW}")
    A(f"s_lshl_b32 s{sT[0]}, s{sT[0]}, 8")
    A(f"s_add_u32 s{sT[0]}, s{sT[0]}, s{sLOC}")
    A(f"s_add_u32 s{sT[0]}, s{sT[0]}, {QP1}")
    A(f"s_add_u32 s{sT[5]}, s{sLOC}, {QS1}")

    def hq_shadow():
        A(f"s_lshl_b32 s{sT[1]}, s{sW}, 8")
        A(f"v_lshl_add_u32 v24, v0, 2, s{sT[1]}")
        A(f"ds_read_b32 v24, v24 offset:{CS}")
        poison(16, f"ds_write_b16 v6, v27 offset:{QB}", 27)
        A(f"v_mov_b32 v27, {hex(f2u(1/640))}")
        A(f"v_mov_b32 v28, {hex(f2u(1e-5))}")
        att_zero()
        A("s_waitcnt lgkmcnt(0)")

    hq_loads = [f"buffer_load_dword v25, v9, {srd(sWS)}, s{sT[5]} offen sc1",
                f"buffer_load_dwordx4 v[{48 if hqd > 1 else 20}:{51 if hqd > 1 else 23}], v8, {srd(sWS)}, s{sT[0]} offen sc1"]

    def hq_check():
        A(f"s_waitcnt vmcnt({2*(hqd-1)})")
        if hqd > 1:
            A("v_mov_b64 v[20:21], v[48:49]")
            A("v_mov_b64 v[22:23], v[50:51]")
        A(f"v_add_f32_dpp v26, v25, v25 {XOR2}")
        A("v_maximum3_f32 v30, v20, v21, v22")
        A("v_maximum3_f32 v30, v30, v23, v26")
        A("v_cmp_u_f32 vcc, v30, v30")

    if hqd > 1:
        emit(hq_loads)
        hq_shadow()
        for i in range(hqd - 2):
            emit(hq_loads)
        poll(hq_loads, hq_check, None, True)
    else:
        poll(hq_loads, hq_check, hq_shadow, True, sf & 2)
    pt(60)
    stamp(11)
    emit(weave(red_quad(20), [f"v_add_f32_dpp v26, v26, v26 row_ror:4 {FULL}",
                              f"v_mul_f32_dpp v29, v26, v27 quad_perm:[1,1,1,1] {FULL}",
                              f"v_fmac_f32_dpp v28, v26, v27 quad_perm:[0,0,0,0] {FULL}"] + ln_rstd(28, 29)))
    A("v_fma_f32 v20, -v29, v24, v20")
    A(f"v_mul_f32 v28, {hex(f2u(QSCALE))}, v28")
    A("v_mul_f32 v20, v20, v28")
    A("v_cvt_pk_bf16_f32 v20, v20, v20")
    pt(61)
    ewrite(16, f"ds_write_b16 v6, v20 offset:{QB}", "L_att2")
    if hqd > 1:
        A("s_waitcnt vmcnt(0)")
    flush(0)
    stamp(0)
    if eb & 16 and prof != 3:
        A("s_barrier")
        A("s_branch L_att2")
    else:
        A("s_branch L_att")
    place("hi")
    A("L_hq_idle:")
    poison_rb()
    if x_dirty:
        A(f"s_lshl3_add_u32 s{sM}, s2, s{sW}")
        A(f"s_lshl_b32 s{sM}, s{sM}, 10")
        A(f"s_add_u32 s{sM}, s{sM}, 0x400000")
        A(f"v_lshl_add_u32 v20, v0, 4, s{sM}")
        A(f"s_cmp_lt_u32 s{sW}, {8 - x_dirty}")
        A("s_cbranch_scc1 L_nodirty")
        A(f"global_store_dwordx4 v20, v[24:27], s[{sWS}:{sWS+1}]")
        A("L_nodirty:")
    writeback(1)
    att_zero()
    flush(0)
    A("s_branch L_att")

    place("ql")
    A("L_q_late:")
    A("s_barrier")
    q_prep()
    A("s_branch L_q_bar")
    place("qt")
    A("L_q_trig:")
    A(f"s_mul_i32 s{sT[5]}, s{sT[0]}, 40")
    A(f"s_add_u32 s{sT[5]}, s{sT[5]}, s{sLOC}")
    A(f"s_add_u32 s{sT[5]}, s{sT[5]}, {XL(1)}")
    trig_poll(10)
    A("L_q_trig2:")
    A("s_barrier")
    if qa:
        att_consts()
    A("s_waitcnt vmcnt(0)")
    A("s_branch L_q_bar")
    place("qw")
    A("L_q_wait:")
    A("s_barrier")
    A(f"s_and_b32 s{sT[2]}, s{sC}, 0x1c")
    A(f"s_lshl1_add_u32 s{sT[2]}, s{sT[2]}, s{sW}")
    A(f"s_cmp_lg_u32 s{sT[2]}, 3")
    A("s_cbranch_scc1 L_q_bar")
    x_sums_prep(QS1)
    A("s_waitcnt lgkmcnt(0)")
    A("s_barrier")
    A("L_rd8s:")
    x_sums()
    redo(8, "L_rd8s", 40, 41, [])
    A("s_branch L_hq")

    place("m")
    A("L_notO:")
    A(f"s_cmp_ge_u32 s{sRO}, 30")
    A("s_cbranch_scc1 L_after_role")
    A(f"s_cmp_lg_u32 s{sL}, 0")
    A("s_cbranch_scc1 L_m_now2")
    if mshift == 1 and w1e < 2:
        late_half(2, 34)
    A(f"s_waitcnt vmcnt({0 if mshift == 2 else 3})" if mshift else "s_waitcnt vmcnt(0)")
    if mshift == 2:
        late_half(2, 34)
    if mshift:
        A("s_barrier")
    A("L_m_now2:")
    A(f"s_sub_u32 s{sT[6]}, s{sRO}, 20")
    A(f"s_lshl_b32 s{sT[5]}, s{sL}, 9")
    A(f"s_lshl3_add_u32 s{sT[5]}, s{sT[6]}, s{sT[5]}")
    A(f"s_add_u32 s{sT[5]}, s{sT[5]}, s{sLOC}")
    A(f"s_add_u32 s{sT[5]}, s{sT[5]}, {XL(0)}")
    A(f"s_lshl_b32 s{sT[3]}, s{sL}, 8")
    A(f"s_add_u32 s{sT[3]}, s{sT[3]}, s{sLOC}")
    A(f"s_add_u32 s{sT[3]}, s{sT[3]}, {HS(0)}")
    only_lanes(17, 0)
    A(f"s_cmp_ge_u32 s{sW}, 6")
    A("s_cbranch_scc1 L_m_x")
    if not mshift:
        A(f"s_cmp_lg_u32 s{sL}, 0")
        A("s_cbranch_scc1 L_m_loaded")
        A("s_barrier")
        A("L_m_loaded:")
    A(f"s_lshr_b32 s{sT[1]}, s{sW}, 1")
    A(f"s_lshl_b32 s{sT[1]}, s{sT[1]}, 13")
    A(f"s_add_u32 s{sT[1]}, s{sT[1]}, {W1L}")
    A(f"s_and_b32 s{sT[2]}, s{sW}, 1")
    A(f"s_lshl_b32 s{sT[2]}, s{sT[2]}, 6")
    A(f"v_xor_b32 v10, s{sT[2]}, v3")
    A(f"v_add_u32 v10, s{sT[1]}, v10")
    A("v_xor_b32 v11, 32, v10")
    for e in range(2):
        for q in range(4):
            A(f"ds_read_b64_tr_b16 {vr(36+8*e+2*q,2)}, v{10+e} offset:{(q>>1)*4096+(q&1)*512}")
    zero(52, 60)
    only_lanes(9, 4)
    A("v_lshl_or_b32 v9, v0, 4, v9")
    A("v_lshrrev_b32 v10, 4, v0")
    A("v_mul_u32_u24 v10, 768, v10")
    A("v_and_b32 v11, 15, v0")
    A("v_lshl_add_u32 v10, v11, 4, v10")
    A("v_lshrrev_b32 v8, 5, v0")
    A("v_lshl_or_b32 v8, v8, 30, v10")
    A(f"s_lshl_b32 s{sT[0]}, s{sW}, 8")
    A(f"s_add_u32 s{sT[0]}, s{sT[0]}, s{sLOC}")
    A(f"s_mul_i32 s7, s{sT[6]}, 768")
    A(f"s_lshr_b32 s{sT[1]}, s{sW}, 1")
    A(f"s_lshl_b32 s{sT[1]}, s{sT[1]}, 8")
    A(f"s_add_u32 s7, s7, s{sT[1]}")
    A(f"s_and_b32 s{sT[1]}, s{sW}, 1")
    A(f"s_lshl3_add_u32 s7, s{sT[1]}, s7")
    A(f"s_add_u32 s7, s7, s{sLOC}")

    def h_loads(d):
        return [f"buffer_load_dwordx4 {vr(d,4)}, v10, {srd(sWS)}, s{sT[1]} offen sc1",
                f"buffer_load_dwordx4 {vr(d+4,4)}, v10, {srd(sWS)}, s{sT[1]} offen offset:3072 sc1",
                f"buffer_load_dwordx4 {vr(d+8,4)}, v8, {srd(sWS)}, s{sT[2]} offen sc1"]

    def h_sum(d):
        A("s_waitcnt vmcnt(1)")
        for h in range(2):
            A(f"v_pk_add_f32 {vr(d+2*h,2)}, {vr(d+2*h,2)}, {vr(d+4+2*h,2)}")
        A("s_waitcnt vmcnt(0)")
        for h in range(2):
            A(f"v_pk_add_f32 {vr(d+2*h,2)}, {vr(d+2*h,2)}, {vr(d+8+2*h,2)}")

    A(f"s_cmp_lg_u32 s{sL}, 0")
    A("s_cbranch_scc1 L_m_havecs")
    for r in range(60, 64):
        A(f"v_mov_b32 v{r}, 0x3f803f80")
    A(f"s_add_u32 s{sT[4]}, s7, {HC}")
    A(f"s_add_u32 s{sT[1]}, s{sT[0]}, {HC}")
    A(f"s_add_u32 s{sT[2]}, s{sT[0]}, {HC+6144}")
    A("s_waitcnt lgkmcnt(0)")
    A("v_smfmac_f32_16x16x64_bf16 v[52:55], v[60:63], v[36:43], v1")
    A("v_smfmac_f32_16x16x64_bf16 v[56:59], v[60:63], v[44:51], v1")
    A("v_add_f32 v60, v52, v53")
    A("v_add_f32 v61, v56, v57")
    lstore([f"buffer_store_dwordx2 v[60:61], v9, {srd(sWS)}, s{sT[4]} offen"])
    zero(52, 60)
    if bearly:
        A("s_waitcnt vmcnt(1)")
        A("s_barrier")
    A(f"s_cmp_ge_u32 s{sW}, 3")
    A("s_cbranch_scc1 L_m_gotcs")

    def hc_check():
        h_sum(12)
        A("v_maximum3_f32 v16, v12, v13, v14")
        A("v_cmp_u_f32 vcc, v16, v15")

    poll(h_loads(12), hc_check, None, True)
    emit(red_quad(12))
    A(f"s_lshl_b32 s{sT[1]}, s{sW}, 8")
    A(f"v_lshl_add_u32 v13, v0, 2, s{sT[1]}")
    A(f"ds_write_b32 v13, v12 offset:{C1}")
    A("L_m_gotcs:")
    if mshift and not bearly:
        A("s_waitcnt vmcnt(0)")
        A("s_barrier")
    if pads and "m2" in pads:
        A("s_branch L_m_havecs")
    place("m2")
    A("L_m_havecs:")
    A(f"s_and_b32 s6, s{sW}, 3")
    A("s_lshl_b32 s6, s6, 5")
    A("v_xor_b32 v11, s6, v3")
    A(f"v_add_u32 v11, {W2L}, v11")
    for kb in range(3):
        for q in range(4):
            A(f"ds_read_b64_tr_b16 {vr(12+8*kb+2*q,2)}, v11 offset:{kb*8192+(q>>1)*4096+(q&1)*512}")
    A("v_and_b32 v11, 7, v0")
    A("v_lshlrev_b32 v11, 4, v11")
    A(f"v_mov_b32 v60, {OOB}")
    A("v_cmp_gt_u32 vcc, 80, v11")
    A(f"s_mul_i32 s{sT[4]}, s{sL}, {HP(1)-HP(0)}")
    A(f"s_add_u32 s{sT[4]}, s{sT[4]}, {HP(0)}")
    A("v_cndmask_b32 v11, v60, v11, vcc")
    A(f"s_add_u32 s7, s7, s{sT[4]}")
    A(f"s_add_u32 s{sT[1]}, s{sT[0]}, s{sT[4]}")
    A(f"s_add_u32 s{sT[2]}, s{sT[1]}, 6144")
    A(f"s_mul_i32 s{sM}, s{sL}, 10")
    A(f"s_add_u32 s{sM}, s{sM}, s{sT[6]}")
    xm_off(sT[4], sM)
    A(f"s_lshl2_add_u32 s{sM}, s{sR}, s{sW}")
    A(f"s_lshl_b32 s{sM}, s{sM}, 6")
    A(f"s_add_u32 s{sT[4]}, s{sT[4]}, s{sM}")
    A(f"s_lshl3_add_u32 s{sT[5]}, s{sT[6]}, s{sT[5]}")
    A(f"s_lshl2_add_u32 s{sT[5]}, s{sW}, s{sT[5]}")
    A(f"s_add_u32 s{sT[5]}, s{sT[5]}, 256")
    A(f"s_lshl_b32 s{sT[0]}, s{sW}, 8")
    A(f"s_cmp_eq_u32 s{sR}, 0")
    A(f"s_cselect_b64 s[{sM}:{sM+1}], 0, -1")
    if eb & 4:
        A(f"s_cmp_ge_u32 s{sW}, 3")
        A("s_cbranch_scc1 L_nopo4")
        poison(4, f"ds_write_b16 v6, v60 offset:{HB}", 60)
        A("L_nopo4:")
    A("s_waitcnt vmcnt(0) lgkmcnt(0)")
    A("v_and_b32 v4, 0xffff0000, v4")
    A("v_and_b32 v5, 0xffff0000, v5")
    A(f"s_cmp_lg_u32 s{sSLOW}, 0")
    A("s_barrier")
    A("L_rd2:")
    A(f"ds_read_b128 v[60:63], v2 offset:{XS}")
    A("s_waitcnt lgkmcnt(0)")
    pt(33)
    A("v_smfmac_f32_16x16x64_bf16 v[52:55], v[60:63], v[36:43], v1")
    A("v_smfmac_f32_16x16x64_bf16 v[56:59], v[60:63], v[44:51], v1")
    A("v_add_f32 v60, v52, v53")
    A("v_add_f32 v61, v56, v57")
    lstore([f"buffer_store_dwordx2 v[60:61], v9, {srd(sWS)}, s7 offen"], cmp=False)
    pt(34)
    redo(2, "L_rd2", 60, 61, [f"v_mov_b64 v[{r}:{r+1}], 0" for r in range(52, 60, 2)])
    stamp(5)

    def hh_shadow():
        A("v_and_or_b32 v56, v6, 31, s6")
        A(f"ds_read_u16 v52, v56 offset:{XS}")
        A(f"v_lshl_add_u32 v58, v0, 2, s{sT[0]}")
        A(f"ds_read_b32 v58, v58 offset:{C1}")
        A("v_mov_b32 v53, 0")
        A("v_mov_b32 v54, 0")
        A("v_mov_b32 v55, 0")
        A("v_and_b32 v9, 15, v0")
        A("v_lshlrev_b32 v9, 2, v9")
        A("v_and_b32 v57, 16, v0")
        A("v_lshl_or_b32 v9, v57, 9, v9")
        A("v_and_b32 v57, 32, v0")
        A("v_lshl_or_b32 v9, v57, 25, v9")
        only_lanes(56, 0)
        A("v_mov_b32 v57, 0")
        A("s_waitcnt lgkmcnt(0)")
        A("v_lshlrev_b32 v52, 16, v52")
        A("v_add_f32 v52, v52, v5")
        A(f"v_cndmask_b32 v52, v52, v53, s[{sM}:{sM+1}]")
        if eb & 4:
            A("v_mov_b32 v59, v52")

    def hh_check():
        A("s_waitcnt vmcnt(3)")
        A("v_pk_add_f32 v[48:49], v[48:49], v[50:51]")
        h_sum(36)
        A("v_maximum3_f32 v40, v48, v49, v36")
        A("v_maximum3_f32 v41, v37, v38, v39")
        A("v_cmp_u_f32 vcc, v40, v41")

    A(f"s_cmp_ge_u32 s{sW}, 3")
    A("s_cbranch_scc1 L_m_nogelu")
    poll([f"buffer_load_dwordx4 v[48:51], v11, {srd(sWS)}, s{sT[3]} offen sc1"] + h_loads(36), hh_check, hh_shadow, True, sf & 4)
    pt(40)
    stamp(6)
    k0 = -2.0 * math.sqrt(2.0 / math.pi) * math.log2(math.e)
    emit(weave(ln_mean(49, 3), ln_sq(48, 3), red_quad(36)))
    emit(weave(ln_rstd(48, 49), ["v_fma_f32 v36, -v49, v58, v36", f"v_mov_b32 v38, {hex(f2u(k0))}"]))
    pt(41)
    A("v_fma_f32 v36, v36, v48, v4")
    A("v_mul_f32 v37, v36, v36")
    A(f"v_fmamk_f32 v37, v37, {hex(f2u(k0*0.044715))}, v38")
    A("v_mul_f32 v37, v37, v36")
    A("v_exp_f32 v37, v37")
    A("v_add_f32 v37, 1.0, v37")
    A("v_rcp_f32 v37, v37")
    A("v_mul_f32 v36, v36, v37")
    A("v_cvt_pk_bf16_f32 v36, v36, v36")
    pt(42)
    ewrite(4, f"ds_write_b16 v6, v36 offset:{HB}", "L_rd4")
    lwait(4)
    A("L_m_hbar:")
    A("s_barrier")
    A("L_rd4:")
    pt(43)
    for kb in range(3):
        A(f"ds_read_b128 {vr(36+4*kb,4)}, v2 offset:{HB+128*kb}")
    if tm == 1:
        lstore([f"buffer_store_dword v57, v56, {srd(sWS)}, s{sT[5]} offen"])
    for kb in range(3):
        lgk(2-kb)
        A(f"v_smfmac_f32_16x16x64_bf16 v[52:55], {vr(36+4*kb,4)}, {vr(12+8*kb,8)}, v1")
    pt(44)
    if tl == 2:
        A(f"s_cmp_eq_u32 s{sL}, 0")
        A(f"s_cselect_b32 s{sT[5]}, {OOB}, s{sT[5]}")
        lstore([f"buffer_store_dword v57, v56, {srd(sWS)}, s{sT[5]} offen"])
    if tm == 2:
        lstore([f"buffer_store_dword v57, v56, {srd(sWS)}, s{sT[5]} offen"])
    A("v_add_f32 v52, v52, v53")
    A(f"buffer_store_dword v52, v9, {srd(sWS)}, s{sT[4]} offen sc1")
    pt(45)
    redo(4, "L_rd4", 52, 52, ["v_mov_b32 v52, v59", "v_mov_b32 v53, 0", "v_mov_b64 v[54:55], 0"])
    if tl == 1:
        A(f"s_cmp_eq_u32 s{sL}, 0")
        A("s_cbranch_scc1 L_m_notl")
        lstore([f"buffer_store_dword v57, v56, {srd(sWS)}, s{sT[5]} offen"])
        A("L_m_notl:")
    if tm == 0:
        lstore([f"buffer_store_dword v57, v56, {srd(sWS)}, s{sT[5]} offen"])
    stamp(7)
    A(f"s_mov_b32 s{sPUB}, 1")
    A("s_branch L_after_role")
    place("ng")
    A("L_m_nogelu:")
    hh_shadow()
    A(f"s_cmp_eq_u32 s{sW}, 3")
    A("s_cbranch_scc1 L_m_hbar")
    if tm == 3:
        A("v_mov_b64 v[52:53], 0")
        A(f"s_addk_i32 s{sT[5]}, -16")
        A(f"s_cmp_eq_u32 s{sW}, 4")
        A(f"s_cselect_b32 s{sT[5]}, s{sT[5]}, {OOB}")
        if tl:
            A(f"s_cmp_eq_u32 s{sL}, 0")
            A(f"s_cselect_b32 s{sT[5]}, s{sT[5]}, {OOB}")
        A(f"s_cmp_lg_u32 s{sSLOW}, 0")
    A("s_barrier")
    if tm == 3:
        lstore([f"buffer_store_dwordx4 v[52:55], v56, {srd(sWS)}, s{sT[5]} offen"], cmp=False)
    A("s_branch L_after_role")
    place("x6")
    A("L_m_x:")
    A(f"s_cmp_eq_u32 s{sW}, 7")
    A("s_cbranch_scc1 L_m_x7")
    A(f"s_lshl3_add_u32 s{sT[2]}, s{sT[6]}, s{sT[3]}")
    A("v_and_b32 v8, 1, v0")
    A(f"v_mul_u32_u24 v8, {XB+384-XS-16}, v8")
    A("v_add_u32 v8, v8, v2")
    A(f"s_cmp_lg_u32 s{sL}, 0")
    A("s_cbranch_scc1 L_m_x6")
    A("s_waitcnt vmcnt(0)")
    A("s_barrier")
    A("L_m_x6:")
    A(f"s_cmp_lg_u32 s{sSLOW}, 0")
    A("s_barrier")
    A("L_rd2s:")
    A(f"ds_read_b128 v[20:23], v8 offset:{XS}")
    A(f"ds_read_b128 v[24:27], v8 offset:{XS+16}")
    lgk(1)
    A("v_mfma_f32_16x16x32_bf16 v[28:31], v[20:23], v[20:23], 0")
    A("s_waitcnt lgkmcnt(0)")
    A("v_mfma_f32_16x16x32_bf16 v[28:31], v[24:27], v[24:27], v[28:31]")
    lstore([f"buffer_store_dwordx2 v[28:29], v17, {srd(sWS)}, s{sT[2]} offen"], cmp=False)
    redo(2, "L_rd2s", 28, 29, [])
    A("s_barrier")
    A("s_branch L_after_role")
    place("x7")
    A("L_m_x7:")
    A("v_lshlrev_b32 v8, 4, v0")
    A("v_and_b32 v10, 15, v0")
    A("v_lshrrev_b32 v9, 4, v0")
    A("v_lshl_or_b32 v10, v10, 2, v9")
    A("v_lshlrev_b32 v10, 1, v10")
    A(f"s_lshl_b32 s{sT[1]}, s{sT[6]}, 7")
    A(f"s_cmp_lg_u32 s{sL}, 0")
    A("s_cbranch_scc1 L_m_x1")
    A("v_mov_b32 v44, v4")
    A("s_waitcnt vmcnt(0)")
    A("s_barrier")
    A("s_branch L_m_x2")
    place("x1")
    A("L_m_x1:")
    xm_off(sT[4], sT[6])
    A(f"s_add_u32 s{sT[4]}, s{sT[4]}, s{sNEAR}")
    gather64(2, sT[4])
    emit(red_quad(44))
    A("v_cvt_pk_bf16_f32 v44, v44, v44")
    A("L_m_x2:")
    if eb & 2:
        A("v_lshlrev_b32 v9, 1, v0")
        poison(2, f"ds_write_b16 v9, v12 offset:{XS}", 12)
        A("s_waitcnt lgkmcnt(0)")
    if xl:
        trig_poll()
    A("v_lshlrev_b32 v11, 16, v44")
    x64_addr(9, 12)
    xa_off(sT[4], sT[6], sT[0])
    A(f"s_add_u32 s{sT[4]}, s{sT[4]}, s{sNEAR}")
    if to < 2 and not xl:
        trig_poll()
    stamp(3)
    pt(29)
    def xa_post():
        emit(red_quad(44))
        A("v_add_f32 v44, v44, v11")
        A("v_cvt_pk_bf16_f32 v45, v44, v44")
        pt(31)
        ewrite(2, f"ds_write_b16 v9, v45 offset:{XS}", "L_eb2")

    gather64(4, sT[4], None, xa_post if lc & 2 else None)
    pt(30)
    stamp(4)
    if prof == 2:
        A(f"s_cmp_lg_u32 s{sL}, 0")
        A("s_cbranch_scc1 L_p2")
        stamp(4, True)
        A("L_p2:")
    if d_dbg:
        A(f"s_cmp_lg_u32 s{sL}, 0")
        A("s_cbranch_scc1 L_dbg1")
        A("s_memrealtime s[96:97]")
        A("L_dbg1:")
    if not lc & 2:
        xa_post()
    lwait(2)
    pt(32)
    A("s_barrier")
    A("L_eb2:")
    def fin_addr():
        A(f"s_add_u32 s{sT[0]}, s{sT[6]}, 10")
        xm_off(sT[4], sT[0])
        A(f"s_add_u32 s{sT[4]}, s{sT[4]}, s{sNEAR}")

    if touch:
        A(f"s_cmp_le_u32 s{sL}, s{sR}")
        A("s_cbranch_scc1 L_notouch")
        A(f"buffer_load_ushort v12, v10, {srd(sOUT)}, s{sT[1]} offen")
        A("L_notouch:")
    if not fl:
        fin_addr()
    A(f"s_lshr_b32 s{sT[5]}, s{sT[1]}, 3")
    A(f"s_add_u32 s{sT[5]}, s{sT[5]}, {XL(3)}")
    A(f"s_cmp_gt_u32 s{sL}, s{sR}")
    A("s_barrier")
    A("s_cbranch_scc0 L_after_role")
    if not tf:
        trig_poll()
    if fl:
        fin_addr()
    stamp(8)
    gather64(2, sT[4])
    emit(red_quad(44))
    A("v_cvt_pk_bf16_f32 v44, v44, v44")
    dm(300)
    A(f"buffer_store_short v44, v10, {srd(sOUT)}, s{sT[1]} offen {('', 'sc1', 'nt', 'sc0 sc1')[outpol]}".strip())
    if d_b == 301:
        A("s_waitcnt vmcnt(0)")
    dm(301)
    if d_dbg:
        A("s_memrealtime s[98:99]")
        A("s_waitcnt lgkmcnt(0)")
        if d_dbg < 5:
            if d_dbg == 4:
                A("s_sub_u32 s92, s98, s96")
            elif d_dbg == 3 and d_b == 200:
                A("s_sub_u32 s92, s96, s100")
            else:
                A(f"s_sub_u32 s92, s{ {1: 98, 2: 96, 3: 94}[d_dbg] }, s100")
        else:
            A("v_lshlrev_b32 v20, 4, v0")
            A(f"v_add_u32 v20, {PROF}, v20")
            A(f"global_load_dwordx4 v[24:27], v20, s[{sWS}:{sWS+1}] sc1")
            A("s_waitcnt vmcnt(0)")
            for r in range(24, 28):
                A(f"v_sub_u32 v{r}, s98, v{r}")
            A("v_max3_u32 v28, v24, v25, v26")
            A("v_max_u32 v28, v28, v27")
            A("v_min3_u32 v29, v24, v25, v26")
            A("v_min_u32 v29, v29, v27")
            for m in (XOR1, XOR2, HMIR, MIR, "row_bcast:15 row_mask:0xa bank_mask:0xf", "row_bcast:31 row_mask:0xc bank_mask:0xf"):
                A(f"v_max_u32_dpp v28, v28, v28 {m}")
                A(f"v_min_u32_dpp v29, v29, v29 {m}")
            A("v_readlane_b32 s92, v28, 63")
            A("v_readlane_b32 s93, v29, 63")
            if d_dbg == 6:
                A("s_sub_u32 s92, s92, s93")
                A("s_lshl_b32 s92, s92, 2")
            if d_dbg == 7:
                A(f"s_mov_b32 s92, {d_fix}")
        if d_dbg in (1, 2, 3, 4):
            A(f"s_lshl_b32 s92, s92, {d_sh}")
        if d_wb:
            A("buffer_wbl2 sc1")
        A("s_min_u32 s92, s92, 30000")
        A("L_echo:")
        A("s_memrealtime s[96:97]")
        A("s_waitcnt lgkmcnt(0)")
        A("s_sub_u32 s96, s96, s98")
        A("s_cmp_lt_u32 s96, s92")
        A("s_cbranch_scc1 L_echo")
    stamp(9, True)
    A("s_branch L_exit")

    A("L_w7:")
    A("v_mov_b32 v59, 0x3f803f80")
    A("v_subrev_u32 v60, 8, v0")
    A("v_cmp_gt_u32 vcc, 40, v60")
    A("v_lshlrev_b32 v14, 3, v0")
    A("v_cndmask_b32 v60, 0, v59, vcc")
    A("v_mov_b32 v61, v60")
    A(f"ds_write_b64 v14, v[60:61] offset:{XB+320}")
    A("v_mov_b32 v60, 0")
    A("v_mov_b32 v61, 0")
    A(f"ds_write_b64 v60, v[60:61] offset:{SL}")
    A("v_mov_b32 v61, -1")
    A(f"ds_write2_b32 v60, v61, v61 offset0:{(SL+12)//4} offset1:{(SL+16)//4}")
    xb_addr(14, 13)
    for i in range(5):
        A(f"ds_write_b32 v14, v{52+i} offset:{XB+64*i}")
    A("s_waitcnt lgkmcnt(0)")
    A("s_branch L_w7back")

    A("L_w3:")
    A("s_cmp_ge_u32 s2, 48")
    A("s_cbranch_scc1 L_w3flag")
    A(f"s_lshl_b32 s{sT[4]}, s2, 11")
    A(f"s_add_u32 s{sT[4]}, s{sT[4]}, {XA(0)}")
    A(f"s_add_u32 s{sT[2]}, s{sLOC}, {F2}")
    A("s_cmp_lt_u32 s2, 40")
    A(f"s_cselect_b32 s{sT[2]}, s{sT[4]}, s{sT[2]}")
    for r in range(16, 20):
        A(f"v_mov_b32 v{r}, -1")
    A("v_lshlrev_b32 v15, 4, v0")
    A(f"buffer_store_dwordx4 v[16:19], v15, {srd(sWS)}, s{sT[2]} offen sc1")
    A("s_cbranch_scc0 L_w3flag")
    A(f"buffer_store_dwordx4 v[16:19], v15, {srd(sWS)}, s{sT[2]} offen offset:1024 sc1")
    A("L_w3flag:")
    A(f"s_lshr_b32 s3, s{sC}, 3")
    A("s_cselect_b32 s3, s3, 3")
    A(f"s_lshl_b32 s{sT[4]}, s{sR}, 5")
    A(f"s_add_u32 s{sT[4]}, s{sT[4]}, s{sC}")
    A(f"s_and_b32 s{sT[1]}, s{sC}, 3")
    A(f"s_lshl_b32 s{sT[1]}, s{sT[1]}, 3")
    A(f"s_lshl_b32 s{sT[2]}, s{sFB}, s{sT[1]}")
    A(f"s_and_b32 s{sT[4]}, s{sT[4]}, 0xfc")
    A(f"v_mov_b32 v62, s{sT[2]}")
    A(f"v_mov_b32 v63, s{sT[4]}")
    if d_dbg >= 5:
        A("s_lshl_b32 s91, s2, 2")
        A(f"s_add_u32 s91, s91, {PROF}")
        A("v_mov_b32 v20, s91")
        A("v_mov_b32 v21, s100")
        A(f"global_store_dword v20, v21, s[{sWS}:{sWS+1}] sc1")
    A("s_branch L_w3back")

    if woe:
        A("L_woe:")
        keep, nstep[0] = nstep[0], wstep
        if woe == 1:
            late_half(0, 20)
        wait(0)
        late_half(1, 20)
        wait(0)
        nstep[0] = keep
        A("s_branch L_nowq2")
    A("L_mconst:")
    A(f"s_sub_u32 s{sT[6]}, s{sRO}, 20")
    A("v_and_b32 v36, 15, v0")
    A(f"s_cmp_eq_u32 s{sW}, 7")
    A("s_cbranch_scc1 L_mconst7")
    A("v_lshlrev_b32 v36, 1, v36")
    A("v_lshlrev_b32 v37, 1, v0")
    A(f"s_mul_i32 s{sT[4]}, s{sR}, 384")
    A(f"s_lshl_b32 s{sT[5]}, s{sW}, 7")
    A(f"s_add_u32 s{sT[4]}, s{sT[4]}, s{sT[5]}")
    A(f"buffer_load_short_d16_hi v4, v37, {srd(sB1)}, s{sT[4]} offen")
    A(f"s_lshl2_add_u32 s{sT[4]}, s{sT[6]}, s{sW}")
    A(f"s_lshl_b32 s{sT[4]}, s{sT[4]}, 5")
    A(f"buffer_load_short_d16_hi v5, v36, {srd(sB2)}, s{sT[4]} offen")
    A("s_branch L_mconst_done")
    A("L_mconst7:")
    A("v_lshrrev_b32 v37, 4, v0")
    A("v_lshl_or_b32 v36, v36, 2, v37")
    A("v_lshlrev_b32 v36, 1, v36")
    A(f"s_lshl_b32 s{sT[4]}, s{sT[6]}, 7")
    A(f"buffer_load_ushort v4, v36, {srd(sX)}, s{sT[4]} offen")
    A("s_branch L_mconst_done")
    A("L_flag2:")
    A("v_mov_b32 v15, 0")
    A(f"ds_read_b32 v15, v15 offset:{SL+8}")
    only_lanes(12, 0)
    A(f"s_lshl2_add_u32 s{sT[3]}, s{sC}, s{sLOC}")
    A(f"s_add_u32 s{sT[3]}, s{sT[3]}, {F2}")
    A("s_waitcnt lgkmcnt(0)")
    lstore([f"buffer_store_dword v15, v12, {srd(sWS)}, s{sT[3]} offen"])
    keep, nstep[0] = nstep[0], fstep
    wait(1)
    nstep[0] = keep
    A("s_branch L_flagged2")

    A("L_l0:")
    for u in range(att_at + 1 + dbl0, 8):
        wait_unless(th6 if u == 6 else th7)
        if rk == 14:
            ticket()
        kv_unit("V", u)
        if tk2 and u == 6:
            A("v_cmp_ne_u32 vcc, -1, v8")
            A("s_bcnt1_i32_b32 s1, vcc_lo")
            if prof:
                A("v_writelane_b32 v7, s1, 45")
    if rk == 14:
        A("s_waitcnt vmcnt(3)")
    if rk >= 13:
        role_write()
    if rk:
        A("L_rspin:")
        A(f"ds_read_b32 v36, v13 offset:{SL+12}")
        A("s_waitcnt lgkmcnt(0)")
        A(f"v_readfirstlane_b32 s{sRO}, v36")
        A(f"s_cmp_eq_u32 s{sRO}, -1")
        A("s_cbranch_scc1 L_rspin")
    o_consts()
    A(f"s_cmp_ge_u32 s{sRO}, 20")
    A("s_cbranch_scc1 L_mconst")
    A("L_mconst_done:")
    if endmode < 2:
        late_half(0, 40)
    if endmode == 0:
        late_half(1, 40)
    stamp(12)
    A("s_mov_b64 vcc, -1")
    A(f"s_cmp_ge_u32 s{sW}, 4")
    A("s_cbranch_scc1 L_pv_b")
    A("s_branch L_pv_a")
    if endmode:
        A("L_l0b:")
        A("L_l0a:")
        A(f"s_mov_b32 s3, s{sT[4]}")
        if fast_hook:
            assert endmode == 2 and mshift == 1 and thw == 999 and not woe
            A(f"s_and_b32 s{sT[5]}, s{sW}, 1")
            A(f"s_lshl_b32 s{sT[5]}, s{sT[5]}, 2")
            A(f"s_lshl_b32 s{sT[6]}, s{sW}, 10")
            A(f"s_add_u32 s{sT[6]}, s{sT[6]}, {WB}")
            A(f"s_cmp_ge_u32 s{sRO}, 20")
            A("s_cbranch_scc1 L_fh_m")
            row128_voff(36, 1280, 8, 9, f"s{sT[5]}")
            A(f"s_and_b32 s{sT[5]}, s{sRO}, 1")
            A(f"s_lshl1_add_u32 s{sT[5]}, s{sR}, s{sT[5]}")
            A(f"s_mul_i32 s{sT[5]}, s{sT[5]}, 48")
            A(f"s_add_u32 s{sT[5]}, s{sT[5]}, s{sW}")
            A(f"s_mul_i32 s{sT[5]}, s{sT[5]}, {8*1280}")
            A(f"s_lshr_b32 s{sT[4]}, s{sRO}, 1")
            A(f"s_lshl_b32 s{sT[4]}, s{sT[4]}, 7")
            A(f"s_add_u32 s{sT[4]}, s{sT[4]}, s{sT[5]}")
            keep = nstep[0]
            if woh:
                if wth:
                    A(f"s_cmp_ge_u32 s{sRO}, {wth}")
                    A("s_cbranch_scc1 L_fh_e")
                    A("s_waitcnt vmcnt(0)")
                    A("L_fh_e:")
                dma(36, sWO, sT[4], sT[6], woh, 64 * 1280, 8192, True)
            wait(woh)
            dma(36, sWO, sT[4], sT[6], 6 - woh, 64 * 1280, 8192)
            A("s_branch L_l0skip")
            A("L_fh_m:")
            row128_voff(36, 3072, 8, 9, f"s{sT[5]}")
            A(f"s_sub_u32 s{sT[4]}, s{sRO}, 20")
            A(f"s_lshl3_add_u32 s{sT[4]}, s{sT[4]}, s{sW}")
            A(f"s_mul_i32 s{sT[4]}, s{sT[4]}, {8*3072}")
            A(f"s_mul_i32 s{sT[5]}, s{sR}, 384")
            A(f"s_add_u32 s{sT[4]}, s{sT[4]}, s{sT[5]}")
            A(f"s_cmp_ge_u32 s{sRO}, 30")
            nstep[0] = keep
            if w1e:
                A("s_cbranch_scc1 L_fh_n")
                dma(36, sW1, sT[4], sT[6], 3, 128, 8192)
                wait(3)
                if w1e == 2:
                    late_half(2, 36, 8)
                A("s_branch L_l0skip")
                A("L_fh_n:")
                nstep[0] = keep
                wait(0)
            else:
                wait(0)
                A("s_cbranch_scc1 L_l0skip")
                dma(36, sW1, sT[4], sT[6], 3, 128, 8192)
        if thw < 999:
            A(f"s_cmp_ge_i32 s1, {thw}")
            A("s_cbranch_scc1 L_l0early")
        if not fast_hook:
            wait(3 if endmode == 1 else 0)
        A("L_l0early:")
        if woe == 1:
            A(f"s_cmp_lt_u32 s{sC}, 8")
            A("s_cbranch_scc1 L_l0skip")
        if endmode == 2 and not fast_hook:
            late_half(0, 36, 8)
        if woe == 2:
            A(f"s_cmp_lt_u32 s{sC}, 8")
            A("s_cbranch_scc1 L_l0skip")
        if not fast_hook:
            late_half(1, 36, 8)
        A("L_l0skip:")
        if thw < 999:
            A("s_waitcnt vmcnt(6)")
        A(f"s_mov_b32 s{sT[4]}, s3")
        A(f"s_cmp_lt_u32 s{sW}, 4")
        A("s_cbranch_scc1 L_pv3a")
        A(f"s_cmp_lg_u32 s{sW}, 7")
        A("s_branch L_pv3b")

    for blk in ool:
        for ln in blk:
            A(ln)

    A("L_exit:")
    writeback(2)
    if prof:
        flush(48 if prof == 4 else 16, True)
        A(f"s_lshl3_add_u32 s{sT[0]}, s2, s{sW}")
        A(f"s_lshl_b32 s{sT[0]}, s{sT[0]}, 8")
        A(f"s_add_u32 s{sT[0]}, s{sT[0]}, {PROF}")
        A(f"v_writelane_b32 v7, s{sCNT}, 40")
        A(f"v_writelane_b32 v7, s{sSLOW}, 41")
        A(f"v_writelane_b32 v7, s{sFB}, 42")
        A(f"v_writelane_b32 v7, s{sRO}, 46")
        A(f"v_lshl_add_u32 v8, v0, 2, s{sT[0]}")
        A(f"global_store_dword v8, v7, s[{sWS}:{sWS+1}]")
    A("L_end:")
    A("s_endpgm")
    A("L_codeend:")
    body = A.finish()

    ref = open(os.path.join(os.path.dirname(os.path.abspath(__file__)), "header.txt")).read()
    head = ref + f"""; @launch grid=(256,1,1) block=(512,1,1) lds={LDS_SIZE}
.amdgcn_target "amdgcn-amd-amdhsa--gfx950"
.text
.globl {KNAME}
.p2align 8
.type {KNAME},@function
{KNAME}:
"""
    tail = f""".section .rodata,"a"
.p2align 6
.amdhsa_kernel {KNAME}
  .amdhsa_next_free_vgpr 256
  .amdhsa_next_free_sgpr 102
  .amdhsa_accum_offset 256
  .amdhsa_group_segment_fixed_size 0
  .amdhsa_kernarg_size 104
  .amdhsa_user_sgpr_count 2
  .amdhsa_user_sgpr_kernarg_segment_ptr 1
  .amdhsa_system_sgpr_workgroup_id_x 1
.end_amdhsa_kernel
"""
    return head + body + tail


if __name__ == "__main__":
    out = None
    kw = {}
    for a in sys.argv[1:]:
        if "=" in a:
            k, v = a.split("=")
            kw[k] = int(v)
        else:
            out = a
    if out is None:
        out = os.path.join(os.path.dirname(os.path.dirname(os.path.abspath(__file__))), NAME + ".s")
    open(out, "w").write(gen(**kw))
    print("wrote", out)
```
